```python
import torch

def _softmax(x, axis=-1):
    return torch.softmax(x, dim=axis)

def _gelu(x):
    return torch.nn.functional.gelu(x, approximate='tanh')

def _silu(x):
    return torch.nn.functional.silu(x)

def _sigmoid(x):
    return torch.sigmoid(x)

def _layernorm(x, axis=-1, eps=1e-05):
    m = x.mean(dim=axis, keepdim=True)
    v = x.var(dim=axis, keepdim=True, unbiased=False)
    return (x - m) / torch.sqrt(v + eps)

def _scatter_add(tgt, idx, src, axis=0):
    return tgt.clone().index_add_(axis, idx, src)

def _segment_sum(src, seg, n):
    out = torch.zeros((n,) + src.shape[1:], dtype=src.dtype)
    return out.index_add_(0, seg, src)

def _pad(x, pw):
    flat = tuple((v for pair in reversed(pw) for v in pair))
    return torch.nn.functional.pad(x, flat)
kernel_name = 'standalone__tree_speculative_verify_tree_attention_over_candidate_token_tree__decode'

def setup_inputs():

    _w = lambda a: (lambda t: t.to(torch.bfloat16) if t.is_floating_point() else t)(torch.as_tensor(a))
    B, Hq, Hkv, T, C, D = (4, 32, 32, 1, 8192, 128)
    tree_mask = torch.zeros((B, T, T), dtype=float)
    for b in range(B):
        parent = torch.zeros(T, dtype=torch.int64)
        for i in range(1, T):
            parent[i] = int(torch.randint(0, i, (1,)).item())
        for i in range(T):
            j = i
            tree_mask[b, i, j] = 1.0
            while j > 0:
                j = parent[j]
                tree_mask[b, i, j] = 1.0
    return {'q': _w((lambda *s: torch.randn(*s, dtype=torch.bfloat16) * 0.8)(B, Hq, T, D)), 'k_cache': _w((lambda *s: torch.randn(*s, dtype=torch.bfloat16) * 0.8)(B, Hkv, C, D)), 'v_cache': _w((lambda *s: torch.randn(*s, dtype=torch.bfloat16) * 0.05)(B, Hkv, C, D)), 'k_tree': _w((lambda *s: torch.randn(*s, dtype=torch.bfloat16) * 0.8)(B, Hkv, T, D)), 'v_tree': _w((lambda *s: torch.randn(*s, dtype=torch.bfloat16) * 0.05)(B, Hkv, T, D)), 'tree_mask': _w(tree_mask)}

def reference(q, k_cache, v_cache, k_tree, v_tree, tree_mask):
    B, Hq, T, D = q.shape
    Hkv, C = (k_cache.shape[1], k_cache.shape[2])
    rep = Hq // Hkv
    kc = (lambda x, n, axis: torch.repeat_interleave(x, n, dim=axis))(k_cache, rep, axis=1)
    vc = (lambda x, n, axis: torch.repeat_interleave(x, n, dim=axis))(v_cache, rep, axis=1)
    kt = (lambda x, n, axis: torch.repeat_interleave(x, n, dim=axis))(k_tree, rep, axis=1)
    vt = (lambda x, n, axis: torch.repeat_interleave(x, n, dim=axis))(v_tree, rep, axis=1)
    k = torch.concatenate([kc, kt], axis=2)
    v = torch.concatenate([vc, vt], axis=2)
    scale = D ** (-0.5)
    scores = torch.einsum('bhqd,bhkd->bhqk', q, k) * scale
    ctx_mask = torch.ones((B, 1, T, C), dtype=scores.dtype)
    tm = tree_mask[:, None, :, :].clone()
    full_mask = torch.concatenate([ctx_mask, tm], axis=-1)
    scores = scores + (1.0 - full_mask) * -1000000000.0
    p = _softmax(scores, axis=-1)
    return torch.einsum('bhqk,bhkd->bhqd', p, v)
```

```python
import re

REG_RE = re.compile(r'^(-|abs\(|\|)?(v|s|a)(\d+)\)?\|?$')
RNG_RE = re.compile(r'^(-)?(v|s|a)\[(\d+):(\d+)\]$')

def regs_of(op):
    op = op.strip()
    m = REG_RE.match(op)
    if m:
        return [(m.group(2), int(m.group(3)))]
    m = RNG_RE.match(op)
    if m:
        return [(m.group(2), i) for i in range(int(m.group(3)), int(m.group(4)) + 1)]
    if op == 'vcc':
        return [('s', 'vcc')]
    if op == 'exec':
        return [('s', 'exec')]
    if op == 'm0':
        return [('s', 'm0')]
    return []

def split_ops(s):
    out, depth, cur = [], 0, ''
    for ch in s:
        if ch in '[(':
            depth += 1
        if ch in '])':
            depth -= 1
        if ch == ',' and depth == 0:
            out.append(cur.strip()); cur = ''
        else:
            cur += ch
    if cur.strip():
        out.append(cur.strip())
    return out

TRANS = ('v_exp_f32', 'v_log_f32', 'v_rcp_f32', 'v_rsq_f32', 'v_sqrt_f32', 'v_sin_f32', 'v_cos_f32')

class Ins:
    def __init__(self, text):
        self.text = text
        t = text.split(';')[0].strip()
        parts = t.split(None, 1)
        self.op = parts[0]
        rest = parts[1] if len(parts) > 1 else ''
        ops = split_ops(rest)
        mods = ''
        if ops:
            toks = ops[-1].split(None, 1)
            if len(toks) > 1:
                ops[-1] = toks[0]; mods = toks[1]
        self.ops, self.mods = ops, mods
        op = self.op
        self.base = re.sub(r'_(e32|e64|dpp|sdwa)$', '', op)
        self.valu = op.startswith('v_')
        self.mfma = op.startswith('v_mfma')
        self.salu = op.startswith('s_')
        self.vmem = op.startswith(('buffer_', 'global_', 'flat_'))
        self.ds = op.startswith('ds_')
        self.dpp = op.endswith('_dpp') or 'row_' in mods or 'quad_perm' in mods
        self.trans = self.base in TRANS
        self.dot = self.base.startswith('v_dot')
        self.perml = self.base.startswith('v_permlane')
        self.nop = 0
        if op == 's_nop':
            self.nop = int(ops[0], 0)
        defs, uses = [], []
        R = [regs_of(o) for o in ops]
        if self.valu:
            b = self.base
            if self.perml:
                defs = R[0] + R[1]; uses = R[0] + R[1]
            elif b.startswith('v_cmp'):
                defs = R[0]; uses = sum(R[1:], [])
                if b.startswith('v_cmpx'):
                    defs = defs + [('s', 'exec')]
            elif b in ('v_add_co_u32', 'v_sub_co_u32', 'v_addc_co_u32', 'v_subb_co_u32', 'v_mad_u64_u32'):
                defs = R[0] + R[1]; uses = sum(R[2:], [])
            else:
                defs = R[0]; uses = sum(R[1:], [])
                if b in ('v_fmac_f32', 'v_dot2c_f32_bf16', 'v_pk_fmac_f16', 'v_writelane_b32') or self.dpp:
                    uses = uses + R[0]
                if b == 'v_cndmask_b32' and len(ops) == 3:
                    uses = uses + [('s', 'vcc')]
        elif self.vmem:
            if 'load' in op and 'lds' not in op and ' lds' not in (' ' + mods):
                defs = R[0]; uses = sum(R[1:], [])
            elif 'atomic' in op and 'sc0' in mods:
                if op.startswith('buffer_'):
                    defs = R[0]; uses = sum(R, [])
                else:
                    defs = R[0]; uses = sum(R[1:], [])
            else:
                uses = sum(R, [])
        elif self.ds:
            if 'read' in op or 'bpermute' in op or 'permute' in op or 'swizzle' in op:
                defs = R[0]; uses = sum(R[1:], [])
            else:
                uses = sum(R, [])
        elif self.salu:
            if op.startswith(('s_cmp', 's_cbranch', 's_branch', 's_waitcnt', 's_nop', 's_barrier', 's_endpgm', 's_setprio', 's_sleep')):
                uses = sum(R, [])
            else:
                defs = R[0] if R else []
                uses = sum(R[1:], [])
                if 'saveexec' in op:
                    defs = defs + [('s', 'exec')]
        self.defs, self.uses = set(defs), set(uses)
        self.widestore = self.vmem and ('store' in op) and op.endswith(('x3', 'x4'))
        self.storedata = set()
        if self.widestore:
            self.storedata = set(R[0]) if op.startswith('buffer_') else set(R[1])

def need(p, c):
    n = 0
    pv = {r for r in p.defs if r[0] in 'va'}
    ps = {r for r in p.defs if r[0] == 's'}
    cu_v = {r for r in c.uses if r[0] in 'va'}
    cd_v = {r for r in c.defs if r[0] in 'va'}
    cu_s = {r for r in c.uses if r[0] == 's'}
    if p.valu and not p.mfma:
        if c.valu and c.dpp and (pv & cu_v):
            n = max(n, 2)
        if c.valu and c.perml and (pv & cu_v):
            n = max(n, 2)
        if c.valu and c.base in ('v_readlane_b32', 'v_readfirstlane_b32') and (pv & cu_v):
            n = max(n, 1)
        if p.trans and c.valu and not c.trans and (pv & cu_v):
            n = max(n, 1)
        if p.trans and (c.vmem or c.ds) and (pv & cu_v):
            n = max(n, 1)
        if p.dot and (c.valu or c.vmem or c.ds) and (pv & (cu_v | cd_v)):
            same_c = False
            if c.base == p.base:
                if c.base == 'v_dot2c_f32_bf16':
                    ab = set(sum([regs_of(o) for o in c.ops[1:3]], []))
                else:
                    ab = set(sum([regs_of(o) for o in c.ops[1:3]], []))
                same_c = not (pv & ab)
            if not same_c:
                n = max(n, 3)
        if c.mfma and (pv & cu_v):
            n = max(n, 2)
        if ps:
            if c.valu and (ps & cu_s):
                if c.base in ('v_readlane_b32', 'v_writelane_b32'):
                    n = max(n, 4)
                n = max(n, 2)
            if c.vmem and (ps & cu_s):
                n = max(n, 5)
            if ('s', 'exec') in ps and c.valu and (c.dpp):
                n = max(n, 5)
            if ('s', 'exec') in ps and c.valu and (c.perml or c.base.startswith('v_read') or c.base.startswith('v_write')):
                n = max(n, 4)
            if c.salu and (ps & cu_s):
                n = max(n, 1)
        if 'sdwa' in p.op and c.valu and (pv & (cu_v | cd_v)):
            n = max(n, 1)
    if p.mfma:
        passes = 8 if '32x32' in p.op else 4
        w = {4: 8, 8: 12}[passes]
        if pv & (cu_v | cd_v):
            if c.mfma:
                cset = set(regs_of(c.ops[3]))
                ab = set(regs_of(c.ops[1]) + regs_of(c.ops[2]))
                if pv & ab:
                    n = max(n, w)
                elif (pv & cset) and not (c.op == p.op and c.ops[3] == p.ops[0]):
                    n = max(n, {4: 6, 8: 10}[passes])
            else:
                n = max(n, w)
        srcc = set(regs_of(p.ops[3]))
        if c.valu and not c.mfma and (srcc & cd_v):
            n = max(n, {4: 3, 8: 7}[passes])
    if p.widestore and c.valu and (p.storedata & cd_v):
        n = max(n, 2)
    if p.widestore and (c.vmem or c.ds) and (p.storedata & cd_v):
        n = max(n, 1)
    if p.salu and ('s', 'm0') in p.defs and (c.vmem and ('lds' in c.op or 'lds' in c.mods) or 'addtid' in c.op):
        n = max(n, 1)
    return n

class Asm:
    def __init__(self):
        self.lines = []
        self.hist = []
        self.npad = 0
    def raw(self, s):
        self.lines.append(s)
    def comment(self, s):
        self.lines.append('    ; ' + s)
    def label(self, name):
        self.lines.append(name + ':')
    def flush(self, n=5):
        probe = 0
        self.i('s_nop %d' % (n - 1))
    def i(self, text):
        for t in text.strip().split('\n'):
            t = t.strip()
            if not t:
                continue
            if t.startswith(';'):
                self.lines.append('    ' + t); continue
            ins = Ins(t)
            req = 0
            dist = 0
            for p in reversed(self.hist):
                r = need(p, ins) - dist
                req = max(req, r)
                dist += (p.nop + 1) if p.op == 's_nop' else 1
                if dist > 24:
                    break
            if req > 0:
                nop = Ins('s_nop %d' % (req - 1))
                self.lines.append('    s_nop %d' % (req - 1))
                self.hist.append(nop)
                self.npad += 1
            self.lines.append('    ' + t)
            self.hist.append(ins)
            if len(self.hist) > 64:
                self.hist = self.hist[-40:]
    def text(self):
        return '\n'.join(self.lines) + '\n'
```

```python
import argparse, os, sys, subprocess
from asmlib import Asm

KN = "standalone__tree_speculative_verify_tree_attention_over_candidate_token_tree__decode"
HDR = """; Kernarg layout for this problem (72 bytes, ptrs only, base s[0:1]):
;   offset   0: d_in[0] q  shape=(4, 32, 1, 128) dtype=bfloat16 strides=(8192, 256, 256, 2) contiguous=True
;   offset   8: d_in[1] k_cache  shape=(4, 32, 8192, 128) dtype=bfloat16 strides=(67108864, 2097152, 256, 2) contiguous=True
;   offset  16: d_in[2] v_cache  shape=(4, 32, 8192, 128) dtype=bfloat16 strides=(67108864, 2097152, 256, 2) contiguous=True
;   offset  24: d_in[3] k_tree  shape=(4, 32, 1, 128) dtype=bfloat16 strides=(8192, 256, 256, 2) contiguous=True
;   offset  32: d_in[4] v_tree  shape=(4, 32, 1, 128) dtype=bfloat16 strides=(8192, 256, 256, 2) contiguous=True
;   offset  40: d_in[5] tree_mask  shape=(4, 1, 1) dtype=bfloat16 strides=(2, 2, 2) contiguous=True
;   offset  48: d_out     shape=(4, 32, 1, 128) dtype=bfloat16 (2 bytes/elem)
"""
NH = 128
HEADB = 1 << 21
SCALE_LOG2 = 0x3e0293ee
import struct
def fbits(x): return struct.unpack('<I', struct.pack('<f', x))[0]
CS = fbits(128 ** -0.5 * 1.4426950408889634)
NEGBIG = fbits(-3.0e38)
MASKC = fbits(-1.0e9 * 1.4426950408889634)

vOFF, vM, vL = 1, 2, 3
vQ = 4
vS = 8
vACC = 12
vT = 20
vMX, vAL, vP, vX = 28, 29, 30, 31
vBUF = 32
sQ, sK, sV, sKT, sVT, sMASK, sOUT, sDBG, sWS = 4, 6, 8, 10, 12, 14, 16, 18, 20
sHEAD, sSPLIT, sWAVE = 22, 23, 3
srdK, srdV = 24, 28
sOFF, sCNT, sT0, sT1, sT2 = 32, 33, 34, 35, 36

def vr(a, n=1):
    return 'v%d' % a if n == 1 else 'v[%d:%d]' % (a, a + n - 1)
def sr(a, n=1):
    return 's%d' % a if n == 1 else 's[%d:%d]' % (a, a + n - 1)

def combine_partials(a, P, S, out_reg_tmp):
    mx, f, L, o0, o1 = vMX, vAL, vL, vACC, vACC + 1
    a.i('v_max_f32 %s, %s, %s' % (vr(mx), vr(P + 2), vr(P + 4 + 2)) if S > 1 else 'v_mov_b32 %s, %s' % (vr(mx), vr(P + 2)))
    for s in range(2, S):
        a.i('v_max_f32 %s, %s, %s' % (vr(mx), vr(mx), vr(P + 4 * s + 2)))
    for s in range(S):
        a.i('v_sub_f32 %s, %s, %s' % (vr(P + 4 * s + 2), vr(P + 4 * s + 2), vr(mx)))
    for s in range(S):
        a.i('v_exp_f32 %s, %s' % (vr(P + 4 * s + 2), vr(P + 4 * s + 2)))
    for s in range(S):
        fs = vr(P + 4 * s + 2)
        if s == 0:
            a.i('v_mul_f32 %s, %s, %s' % (vr(L), fs, vr(P + 3)))
            a.i('v_mul_f32 %s, %s, %s' % (vr(o0), fs, vr(P + 0)))
            a.i('v_mul_f32 %s, %s, %s' % (vr(o1), fs, vr(P + 1)))
        else:
            a.i('v_fmac_f32 %s, %s, %s' % (vr(L), fs, vr(P + 4 * s + 3)))
            a.i('v_fmac_f32 %s, %s, %s' % (vr(o0), fs, vr(P + 4 * s + 0)))
            a.i('v_fmac_f32 %s, %s, %s' % (vr(o1), fs, vr(P + 4 * s + 1)))
    finish(a, o0, o1, L, out_reg_tmp)

def finish(a, o0, o1, L, dst):
    a.i('v_rcp_f32 %s, %s' % (vr(L), vr(L)))
    a.i('v_mul_f32 %s, %s, %s' % (vr(o0), vr(o0), vr(L)))
    a.i('v_mul_f32 %s, %s, %s' % (vr(o1), vr(o1), vr(L)))
    a.i('v_cvt_pk_bf16_f32 %s, %s, %s' % (vr(dst), vr(o0), vr(o1)))

def gen(args):
    S, W, D = args.split, args.waves, args.depth
    pol = (' ' + args.pol.replace('+', ' ')) if args.pol else ''
    NWG = NH * S
    wg_bytes = HEADB // S
    NT = wg_bytes // (4096 * W)
    assert NT >= D and wg_bytes % (4096 * W) == 0
    comb = args.comb if S > 1 else 'none'
    lds = W * 512 + 128
    nvgpr = vBUF + 32 * D
    nvgpr = max(nvgpr, vBUF + 2 * W + 8, vBUF + 4 * S)
    full = not args.noc
    assert args.noc or args.group <= S
    a = Asm()
    main = KN + '_kernel'
    a.raw(HDR.rstrip('\n'))
    a.raw('; generated: ' + ' '.join(sys.argv[1:]))
    if comb == 'launch2':
        a.raw('; @launch kernel=%s grid=(%d,1,1) block=(%d,1,1) lds=%d' % (main, NWG, 64 * W, lds))
        a.raw('; @launch kernel=combine_kernel grid=(%d,1,1) block=(64,1,1) lds=0' % NH)
    else:
        a.raw('; @launch grid=(%d,1,1) block=(%d,1,1) lds=%d' % (NWG, 64 * W, lds))
    a.raw('.amdgcn_target "amdgcn-amd-amdhsa--gfx950"')
    a.raw('.text')
    a.raw('.globl %s' % main)
    a.raw('.p2align 8')
    a.raw('.type %s,@function' % main)
    a.raw(main + ':')
    a.i('s_cmp_ge_u32 s2, %d' % NWG)
    a.i('s_cbranch_scc1 L_end')
    if args.diag is not None:
        a.i('s_getreg_b32 s34, hwreg(HW_REG_XCC_ID)')
        a.i('s_and_b32 s34, s34, 7')
        a.i('s_sub_u32 s34, s2, s34')
        a.i('s_and_b32 s34, s34, %d' % args.diagmask)
        a.i('s_cmp_eq_u32 s34, %d' % args.diag)
        a.i('s_cbranch_scc1 L_nodelay')
        a.i('s_mov_b32 s35, 12')
        a.label('L_delay')
        a.i('s_sleep 127')
        a.i('s_sub_u32 s35, s35, 1')
        a.i('s_cmp_lg_u32 s35, 0')
        a.i('s_cbranch_scc1 L_delay')
        a.label('L_nodelay')
    a.i('s_load_dwordx16 s[4:19], s[0:1], 0')
    a.i('s_load_dwordx2 s[20:21], s[0:1], 64')
    if args.stamp:
        a.i('s_memrealtime s[40:41]')
        a.i('s_getreg_b32 s46, hwreg(HW_REG_XCC_ID)')
        a.i('s_getreg_b32 s47, hwreg(HW_REG_HW_ID)')
    a.i('v_lshrrev_b32 %s, 6, v0' % vr(vX))
    a.i('v_and_b32 v0, 63, v0')
    a.i('v_readfirstlane_b32 %s, %s' % (sr(sWAVE), vr(vX)))
    a.i('v_lshlrev_b32 %s, 4, v0' % vr(vOFF))
    a.i('v_and_b32 %s, 0xf0, %s' % (vr(vX), vr(vOFF)))
    if args.map == 'hs':
        sh = S.bit_length() - 1
        a.i('s_lshr_b32 %s, s2, %d' % (sr(sHEAD), sh))
        a.i('s_and_b32 %s, s2, %d' % (sr(sSPLIT), S - 1))
    elif args.map == 'sh':
        a.i('s_and_b32 %s, s2, %d' % (sr(sHEAD), NH - 1))
        a.i('s_lshr_b32 %s, s2, 7' % sr(sSPLIT))
    elif args.map == 'x8':
        sh = S.bit_length() - 1
        a.i('s_and_b32 %s, s2, 7' % sr(sT0))
        a.i('s_lshr_b32 %s, s2, 3' % sr(sT1))
        a.i('s_and_b32 %s, %s, %d' % (sr(sSPLIT), sr(sT1), S - 1))
        a.i('s_lshr_b32 %s, %s, %d' % (sr(sT1), sr(sT1), sh))
        a.i('s_lshl_b32 %s, %s, 3' % (sr(sT1), sr(sT1)))
        a.i('s_or_b32 %s, %s, %s' % (sr(sHEAD), sr(sT1), sr(sT0)))
    a.i('s_lshl_b32 %s, %s, 8' % (sr(sT2), sr(sHEAD)))
    a.i('v_add_u32 %s, %s, %s' % (vr(vX), sr(sT2), vr(vX)))
    G = args.group
    a.i('s_mul_i32 %s, %s, %d' % (sr(sT0), sr(sHEAD), S))
    a.i('s_add_u32 %s, %s, %s' % (sr(sT0), sr(sT0), sr(sSPLIT)))
    a.i('s_and_b32 %s, %s, %d' % (sr(sT1), sr(sT0), G - 1))
    a.i('s_lshr_b32 %s, %s, %d' % (sr(sT0), sr(sT0), G.bit_length() - 1))
    region = G * wg_bytes
    if args.order == 'inter':
        a.i('s_mul_i32 %s, %s, %d' % (sr(sOFF), sr(sT1), W * 4096))
        a.i('s_lshl_b32 %s, %s, 12' % (sr(sT2), sr(sWAVE)))
        a.i('s_add_u32 %s, %s, %s' % (sr(sOFF), sr(sOFF), sr(sT2)))
        stride = 4096 * W * G
    else:
        assert G == 1
        a.i('s_mul_i32 %s, %s, %d' % (sr(sOFF), sr(sWAVE), wg_bytes // W))
        stride = 4096
    wrap = 0
    if args.skew:
        assert args.order == 'inter'
        a.i('s_mul_i32 %s, %s, %d' % (sr(sT2), sr(sT0), args.skew))
        a.i('s_and_b32 %s, %s, %d' % (sr(sT2), sr(sT2), NT - 1))
        a.i('s_mul_i32 %s, %s, %d' % (sr(sT2), sr(sT2), stride))
        a.i('s_add_u32 %s, %s, %s' % (sr(sOFF), sr(sOFF), sr(sT2)))
        wrap = region - 1
    a.i('s_mul_i32 %s, %s, %d' % (sr(sT0), sr(sT0), region))
    def adv():
        a.i('s_add_u32 %s, %s, %d' % (sr(sOFF), sr(sOFF), stride))
        if wrap:
            a.i('s_and_b32 %s, %s, 0x%x' % (sr(sOFF), sr(sOFF), wrap))
    a.i('s_waitcnt lgkmcnt(0)')
    a.i('global_load_dwordx4 %s, %s, %s' % (vr(vQ, 4), vr(vX), sr(sQ, 2)))
    for (srd, p) in ((srdK, sK), (srdV, sV)):
        a.i('s_add_u32 %s, %s, %s' % (sr(srd), sr(p), sr(sT0)))
        a.i('s_addc_u32 %s, %s, 0' % (sr(srd + 1), sr(p + 1)))
        a.i('s_and_b32 %s, %s, 0xffff' % (sr(srd + 1), sr(srd + 1)))
        a.i('s_mov_b32 %s, %d' % (sr(srd + 2), region))
        a.i('s_mov_b32 %s, 0x20000' % sr(srd + 3))
    a.i('s_or_b32 %s, %s, %s' % (sr(sT1), sr(sSPLIT), sr(sWAVE)))
    a.i('s_cmp_eq_u32 %s, 0' % sr(sT1))
    a.i('s_cbranch_scc0 L_notree_ld')
    a.i('global_load_dwordx4 %s, %s, %s' % (vr(vT, 4), vr(vX), sr(sKT, 2)))
    a.i('global_load_dwordx4 %s, %s, %s' % (vr(vT + 4, 4), vr(vX), sr(sVT, 2)))
    a.i('s_lshr_b32 %s, %s, 5' % (sr(sT2), sr(sHEAD)))
    a.i('s_lshl_b32 %s, %s, 1' % (sr(sT2), sr(sT2)))
    a.i('v_mov_b32 %s, %s' % (vr(vMX), sr(sT2)))
    a.i('global_load_ushort %s, %s, %s' % (vr(vMX), vr(vMX), sr(sMASK, 2)))
    a.label('L_notree_ld')

    def K(d): return vBUF + 32 * d
    def V(d): return vBUF + 32 * d + 16
    def loads(base, srd):
        for u in range(4):
            off = ' offset:%d' % (1024 * u) if u else ''
            a.i('buffer_load_dwordx4 %s, %s, %s, %s offen%s%s' % (vr(base + 4 * u, 4), vr(vOFF), sr(srd, 4), sr(sOFF), off, pol))
    for d in range(D):
        loads(K(d), srdK)
        loads(V(d), srdV)
        adv()
    a.i('v_mov_b32 %s, 0x%x' % (vr(vM), NEGBIG))
    a.i('v_mov_b32 %s, 0' % vr(vL))
    for j in range(8):
        a.i('v_mov_b32 %s, 0' % vr(vACC + j))
    a.i('s_waitcnt vmcnt(%d)' % (8 * D))
    if args.stamp:
        a.i('s_memrealtime s[42:43]')
    a.i('s_cmp_eq_u32 %s, 0' % sr(sT1))
    a.i('s_cbranch_scc0 L_notree')
    for j in range(4):
        a.i('v_dot2_f32_bf16 %s, %s, %s, %s' % (vr(vS), vr(vT + j), vr(vQ + j), '0' if j == 0 else vr(vS)))
    for r in (8, 4, 2, 1):
        a.i('v_add_f32_dpp %s, %s, %s row_ror:%d row_mask:0xf bank_mask:0xf' % (vr(vS), vr(vS), vr(vS), r))
    a.i('v_lshlrev_b32 %s, 16, %s' % (vr(vMX), vr(vMX)))
    a.i('v_sub_f32 %s, 1.0, %s' % (vr(vMX), vr(vMX)))
    a.i('v_mul_f32 %s, 0x%x, %s' % (vr(vMX), MASKC, vr(vMX)))
    a.i('v_mul_f32 %s, 0x%x, %s' % (vr(vS), CS, vr(vS)))
    a.i('s_mov_b64 exec, 0xffff')
    a.i('v_add_f32 %s, %s, %s' % (vr(vM), vr(vS), vr(vMX)))
    for j in range(4):
        a.i('v_lshlrev_b32 %s, 16, %s' % (vr(vACC + 2 * j), vr(vT + 4 + j)))
        a.i('v_and_b32 %s, 0xffff0000, %s' % (vr(vACC + 2 * j + 1), vr(vT + 4 + j)))
    a.i('s_mov_b64 exec, 0xf')
    a.i('v_mov_b32 %s, 1.0' % vr(vL))
    a.i('s_mov_b64 exec, -1')
    a.label('L_notree')
    a.i('s_nop 1')

    BC = [0, 8, 4, 12]
    def step(d, prefetch, nK, nV):
        k, v = K(d), V(d)
        a.i('s_waitcnt vmcnt(%d)' % nK)
        if full:
            for j in range(4):
                for u in range(4):
                    a.i('v_dot2_f32_bf16 %s, %s, %s, %s' % (vr(vS + u), vr(k + 4 * u + j), vr(vQ + j), '0' if j == 0 else vr(vS + u)))
        if prefetch:
            loads(k, srdK)
        if full:
            s0, s1, s2, s3 = [vr(vS + u) for u in range(4)]
            dp = lambda dst, src, ctl, bank: a.i('v_add_f32_dpp %s, %s, %s %s row_mask:0xf bank_mask:0x%x' % (dst, src, src, ctl, bank))
            dp(s0, s0, 'row_ror:8', 0x3); dp(s2, s2, 'row_ror:8', 0x3)
            dp(s0, s1, 'row_ror:8', 0xc); dp(s2, s3, 'row_ror:8', 0xc)
            dp(s0, s0, 'row_half_mirror', 0x5); dp(s0, s2, 'row_half_mirror', 0xa)
            dp(s0, s0, 'quad_perm:[1,0,3,2]', 0xf); dp(s0, s0, 'quad_perm:[2,3,0,1]', 0xf)
            a.i('v_mul_f32 %s, 0x%x, %s' % (s0, CS, s0))
            a.i('v_max_f32_dpp %s, %s, %s row_ror:4 row_mask:0xf bank_mask:0xf' % (vr(vMX), s0, s0))
            a.i('v_max_f32_dpp %s, %s, %s row_ror:8 row_mask:0xf bank_mask:0xf' % (vr(vMX), vr(vMX), vr(vMX)))
            a.i('v_max_f32 %s, %s, %s' % (vr(vMX), vr(vM), vr(vMX)))
            a.i('v_sub_f32 %s, %s, %s' % (vr(vAL), vr(vM), vr(vMX)))
            a.i('v_sub_f32 %s, %s, %s' % (vr(vP), s0, vr(vMX)))
            a.i('v_exp_f32 %s, %s' % (vr(vAL), vr(vAL)))
            a.i('v_exp_f32 %s, %s' % (vr(vP), vr(vP)))
            a.i('v_mov_b32 %s, %s' % (vr(vM), vr(vMX)))
            for j in range(8):
                a.i('v_mul_f32 %s, %s, %s' % (vr(vACC + j), vr(vAL), vr(vACC + j)))
            a.i('v_fma_f32 %s, %s, %s, %s' % (vr(vL), vr(vL), vr(vAL), vr(vP)))
        a.i('s_waitcnt vmcnt(%d)' % nV)
        if full:
            for u in range(4):
                for j in range(4):
                    a.i('v_lshlrev_b32 %s, 16, %s' % (vr(vT + 2 * j), vr(v + 4 * u + j)))
                    a.i('v_and_b32 %s, 0xffff0000, %s' % (vr(vT + 2 * j + 1), vr(v + 4 * u + j)))
                for j in range(8):
                    a.i('v_fmac_f32_dpp %s, %s, %s row_newbcast:%d row_mask:0xf bank_mask:0xf' % (vr(vACC + j), vr(vP), vr(vT + j), BC[u]))
        if prefetch:
            loads(v, srdV)
            adv()

    vTR, sTI = 31, 55
    def trace():
        if args.trace:
            a.i('s_memrealtime s[52:53]')
            a.i('s_waitcnt lgkmcnt(0)')
            a.i('s_mov_b32 m0, s%d' % sTI)
            a.i('s_nop 3')
            a.i('v_writelane_b32 %s, s52, m0' % vr(vTR))
            a.i('s_add_u32 s%d, s%d, 1' % (sTI, sTI))
    if args.trace:
        a.i('v_mov_b32 %s, 0' % vr(vTR))
        a.i('s_mov_b32 s%d, 0' % sTI)
    npre = NT - D
    nloop, rem = divmod(npre, D)
    if nloop > 0:
        a.i('s_mov_b32 %s, %d' % (sr(sCNT), nloop))
        a.raw('.p2align 6') if args.align else None
        a.label('L_loop')
        for d in range(D):
            step(d, True, 8 * D - 4, 8 * D - 4)
        trace()
        a.i('s_sub_u32 %s, %s, 1' % (sr(sCNT), sr(sCNT)))
        if args.stamp:
            a.i('s_cmp_eq_u32 %s, %d' % (sr(sCNT), nloop // 2))
            a.i('s_cbranch_scc0 L_nomid')
            a.i('s_memrealtime s[50:51]')
            a.label('L_nomid')
        a.i('s_cmp_lg_u32 %s, 0' % sr(sCNT))
        a.i('s_cbranch_scc1 L_loop')
    for d in range(rem):
        step(d, True, 8 * D - 4, 8 * D - 4)
    for i in range(D):
        d = (rem + i) % D
        left = D - i
        step(d, False, 8 * left - 4, 8 * left - 8)

    if args.trace:
        trace()
        a.i('s_mul_i32 s48, s2, %d' % W)
        a.i('s_add_u32 s48, s48, %s' % sr(sWAVE))
        a.i('s_lshl_b32 s48, s48, 8')
        a.i('s_add_u32 s48, s48, 0x2000000')
        a.i('v_lshlrev_b32 v20, 2, v0')
        a.i('v_add_u32 v20, s48, v20')
        a.i('global_store_dword v20, %s, s[20:21]' % vr(vTR))
    if args.stamp:
        a.i('s_memrealtime s[44:45]')
        a.i('s_waitcnt lgkmcnt(0)')
        a.i('s_mul_i32 s48, s2, %d' % W)
        a.i('s_add_u32 s48, s48, %s' % sr(sWAVE))
        a.i('s_lshl_b32 s48, s48, 5')
        a.i('s_add_u32 s48, s48, 0x1000000')
        a.i('v_mov_b32 v20, s40')
        a.i('v_mov_b32 v21, s42')
        a.i('v_mov_b32 v22, s44')
        a.i('v_mov_b32 v23, s46')
        a.i('v_mov_b32 v24, s47')
        a.i('v_mov_b32 v25, s48')
        a.i('s_mov_b64 exec, 1')
        a.i('global_store_dwordx4 v25, v[20:23], s[20:21]')
        a.i('global_store_dword v25, v24, s[20:21] offset:16')
        a.i('v_mov_b32 v26, %d' % ((nloop - nloop // 2) * D))
        a.i('v_mov_b32 v27, s50')
        a.i('global_store_dwordx2 v25, v[26:27], s[20:21] offset:24')
        a.i('s_mov_b64 exec, -1')
        a.i('s_nop 1')
    t0, t1 = vT, vT + 1
    a.i('v_add_f32_dpp %s, %s, %s row_ror:4 row_mask:0xf bank_mask:0xf' % (vr(vL), vr(vL), vr(vL)))
    a.i('v_mov_b32 %s, %s' % (vr(t0), vr(vM)))
    a.i('v_mov_b32 %s, %s' % (vr(t1), vr(vM)))
    a.i('v_add_f32_dpp %s, %s, %s row_ror:8 row_mask:0xf bank_mask:0xf' % (vr(vL), vr(vL), vr(vL)))
    a.i('v_permlane32_swap_b32 %s, %s' % (vr(t0), vr(t1)))
    a.i('v_max_f32 %s, %s, %s' % (vr(t0), vr(t0), vr(t1)))
    a.i('v_mov_b32 %s, %s' % (vr(t1), vr(t0)))
    a.i('v_permlane16_swap_b32 %s, %s' % (vr(t0), vr(t1)))
    a.i('v_max_f32 %s, %s, %s' % (vr(vMX), vr(t0), vr(t1)))
    a.i('v_sub_f32 %s, %s, %s' % (vr(vAL), vr(vM), vr(vMX)))
    a.i('v_exp_f32 %s, %s' % (vr(vAL), vr(vAL)))
    a.i('v_and_b32 %s, 15, v0' % vr(vX))
    a.i('v_lshlrev_b32 %s, 5, %s' % (vr(vX), vr(vX)))
    a.i('v_bfe_u32 %s, v0, 4, 1' % vr(vP))
    a.i('v_lshl_add_u32 %s, %s, 3, %s' % (vr(vX), vr(vP), vr(vX)))
    a.i('v_lshrrev_b32 %s, 5, v0' % vr(vP))
    a.i('v_lshl_add_u32 %s, %s, 2, %s' % (vr(vX), vr(vP), vr(vX)))
    a.i('s_lshl_b32 %s, %s, 9' % (sr(sT0), sr(sWAVE)))
    a.i('v_add_u32 %s, %s, %s' % (vr(vX), sr(sT0), vr(vX)))
    a.i('v_mul_f32 %s, %s, %s' % (vr(vL), vr(vAL), vr(vL)))
    for j in range(8):
        a.i('v_mul_f32 %s, %s, %s' % (vr(vACC + j), vr(vAL), vr(vACC + j)))
    a.i('v_mov_b32 %s, %s' % (vr(t1), vr(vL)))
    a.i('v_permlane32_swap_b32 %s, %s' % (vr(vL), vr(t1)))
    for j in range(4):
        a.i('v_permlane32_swap_b32 %s, %s' % (vr(vACC + 2 * j), vr(vACC + 2 * j + 1)))
    a.i('v_add_f32 %s, %s, %s' % (vr(vL), vr(vL), vr(t1)))
    for j in range(4):
        a.i('v_add_f32 %s, %s, %s' % (vr(vACC + 2 * j), vr(vACC + 2 * j), vr(vACC + 2 * j + 1)))
    a.i('v_mov_b32 %s, %s' % (vr(t1), vr(vL)))
    a.i('v_permlane16_swap_b32 %s, %s' % (vr(vACC + 0), vr(vACC + 2)))
    a.i('v_permlane16_swap_b32 %s, %s' % (vr(vACC + 4), vr(vACC + 6)))
    a.i('v_permlane16_swap_b32 %s, %s' % (vr(vL), vr(t1)))
    a.i('v_add_f32 %s, %s, %s' % (vr(vACC + 0), vr(vACC + 0), vr(vACC + 2)))
    a.i('v_add_f32 %s, %s, %s' % (vr(vACC + 4), vr(vACC + 4), vr(vACC + 6)))
    a.i('v_add_f32 %s, %s, %s' % (vr(vMX + 1), vr(vL), vr(t1)))
    a.i('ds_write2_b32 %s, %s, %s offset0:0 offset1:4' % (vr(vX), vr(vACC + 0), vr(vACC + 4)))
    a.i('s_lshl_b32 %s, %s, 3' % (sr(sT0), sr(sWAVE)))
    a.i('s_add_u32 %s, %s, %d' % (sr(sT0), sr(sT0), W * 512))
    a.i('v_mov_b32 %s, %s' % (vr(vX), sr(sT0)))
    a.i('s_mov_b64 exec, 1')
    a.i('ds_write_b64 %s, %s' % (vr(vX), vr(vMX, 2)))
    a.i('s_mov_b64 exec, -1')
    a.i('s_waitcnt lgkmcnt(0)')
    a.i('s_barrier')
    a.i('s_cmp_eq_u32 %s, 0' % sr(sWAVE))
    a.i('s_cbranch_scc0 L_end')
    a.i('v_and_b32 %s, 15, v0' % vr(vX))
    a.i('v_lshlrev_b32 %s, 3, %s' % (vr(vP), vr(vX)))
    a.i('v_lshlrev_b32 %s, 3, v0' % vr(vOFF))
    a.i('ds_read_b64 %s, %s offset:%d' % (vr(vMX, 2), vr(vP), W * 512))
    n1 = min(W, 14)
    for w in range(n1):
        a.i('ds_read_b64 %s, %s offset:%d' % (vr(vBUF + 2 * w, 2), vr(vOFF), w * 512))
    a.i('s_waitcnt lgkmcnt(%d)' % n1)
    if W < 16:
        a.i('v_cmp_gt_u32 vcc, %d, %s' % (W, vr(vX)))
        a.i('v_mov_b32 %s, 0x%x' % (vr(t0), NEGBIG))
        a.i('v_cndmask_b32 %s, %s, %s, vcc' % (vr(vMX), vr(t0), vr(vMX)))
        a.i('v_cndmask_b32 %s, 0, %s, vcc' % (vr(vMX + 1), vr(vMX + 1)))
    a.i('v_max_f32_dpp %s, %s, %s row_ror:8 row_mask:0xf bank_mask:0xf' % (vr(vM), vr(vMX), vr(vMX)))
    for r in (4, 2, 1):
        a.i('v_max_f32_dpp %s, %s, %s row_ror:%d row_mask:0xf bank_mask:0xf' % (vr(vM), vr(vM), vr(vM), r))
    a.i('v_sub_f32 %s, %s, %s' % (vr(vP), vr(vMX), vr(vM)))
    a.i('v_exp_f32 %s, %s' % (vr(vP), vr(vP)))
    a.i('v_mul_f32 %s, %s, %s' % (vr(vL), vr(vP), vr(vMX + 1)))
    for r in (8, 4, 2, 1):
        a.i('v_add_f32_dpp %s, %s, %s row_ror:%d row_mask:0xf bank_mask:0xf' % (vr(vL), vr(vL), vr(vL), r))
    if n1 < W:
        a.i('s_waitcnt lgkmcnt(8)')
        for w in range(n1, W):
            a.i('ds_read_b64 %s, %s offset:%d' % (vr(vBUF + 2 * w, 2), vr(vOFF), w * 512))
    a.i('s_waitcnt lgkmcnt(0)')
    o0, o1 = vACC, vACC + 1
    for w in range(W):
        opn = 'v_mul_f32_dpp' if w == 0 else 'v_fmac_f32_dpp'
        a.i('%s %s, %s, %s row_newbcast:%d row_mask:0xf bank_mask:0xf' % (opn, vr(o0), vr(vP), vr(vBUF + 2 * w), w))
        a.i('%s %s, %s, %s row_newbcast:%d row_mask:0xf bank_mask:0xf' % (opn, vr(o1), vr(vP), vr(vBUF + 2 * w + 1), w))
    def store_out():
        a.i('s_lshl_b32 %s, %s, 8' % (sr(sT0), sr(sHEAD)))
        a.i('v_lshlrev_b32 %s, 2, v0' % vr(vX))
        a.i('v_add_u32 %s, %s, %s' % (vr(vX), sr(sT0), vr(vX)))
        a.i('global_store_dword %s, %s, %s' % (vr(vX), vr(t0), sr(sOUT, 2)))
    if comb == 'none':
        finish(a, o0, o1, vL, t0)
        store_out()
    else:
        a.i('v_mov_b32 %s, %s' % (vr(vACC + 2), vr(vM)))
        a.i('v_mov_b32 %s, %s' % (vr(vACC + 3), vr(vL)))
        a.i('s_mul_i32 %s, %s, %d' % (sr(sT0), sr(sHEAD), S * 1024))
        a.i('v_lshlrev_b32 %s, 4, v0' % vr(vOFF))
        a.i('v_add_u32 %s, %s, %s' % (vr(vOFF), sr(sT0), vr(vOFF)))
        a.i('s_lshl_b32 %s, %s, 10' % (sr(sT1), sr(sSPLIT)))
        a.i('v_add_u32 %s, %s, %s' % (vr(vX), sr(sT1), vr(vOFF)))
        if comb == 'launch2':
            a.i('global_store_dwordx4 %s, %s, %s' % (vr(vX), vr(vACC, 4), sr(sWS, 2)))
        else:
            a.i('global_store_dwordx4 %s, %s, %s sc1' % (vr(vX), vr(vACC, 4), sr(sWS, 2)))
            a.i('s_lshr_b32 %s, %s, 1' % (sr(sT0), sr(sHEAD)))
            a.i('s_lshl_b32 %s, %s, 2' % (sr(sT0), sr(sT0)))
            a.i('s_and_b32 %s, %s, 1' % (sr(sT1), sr(sHEAD)))
            a.i('s_lshl_b32 %s, %s, 4' % (sr(sT1), sr(sT1)))
            a.i('s_lshl_b32 %s, 1, %s' % (sr(sT2), sr(sT1)))
            a.i('v_mov_b32 %s, %s' % (vr(vP), sr(sT0)))
            a.i('v_mov_b32 %s, %s' % (vr(vAL), sr(sT2)))
            a.i('s_waitcnt vmcnt(0)')
            a.i('s_mov_b64 exec, 1')
            a.i('global_atomic_add %s, %s, %s, %s sc0' % (vr(vAL), vr(vP), vr(vAL), sr(sDBG, 2)))
            a.i('s_waitcnt vmcnt(0)')
            a.i('v_readfirstlane_b32 %s, %s' % (sr(sT2), vr(vAL)))
            a.i('s_mov_b64 exec, -1')
            a.i('s_lshr_b32 %s, %s, %s' % (sr(sT2), sr(sT2), sr(sT1)))
            a.i('s_and_b32 %s, %s, 0xffff' % (sr(sT2), sr(sT2)))
            a.i('s_cmp_eq_u32 %s, %d' % (sr(sT2), S - 1))
            a.i('s_cbranch_scc0 L_end')
            for s in range(S):
                if s < 4:
                    a.i('global_load_dwordx4 %s, %s, %s offset:%d sc1' % (vr(vBUF + 4 * s, 4), vr(vOFF), sr(sWS, 2), 1024 * s))
                else:
                    if s % 4 == 0:
                        a.i('v_add_u32 %s, 4096, %s' % (vr(vOFF), vr(vOFF)))
                    a.i('global_load_dwordx4 %s, %s, %s offset:%d sc1' % (vr(vBUF + 4 * s, 4), vr(vOFF), sr(sWS, 2), 1024 * (s % 4)))
            a.i('s_waitcnt vmcnt(0)')
            combine_partials(a, vBUF, S, t0)
            store_out()
    if args.stamp:
        a.i('s_branch L_stamp_end')
    a.label('L_end')
    a.i('s_endpgm')
    if args.stamp:
        a.label('L_stamp_end')
        a.i('s_waitcnt vmcnt(0)')
        a.i('s_memrealtime s[44:45]')
        a.i('s_waitcnt lgkmcnt(0)')
        a.i('v_mov_b32 v20, s44')
        a.i('v_mov_b32 v25, s48')
        a.i('s_mov_b64 exec, 1')
        a.i('global_store_dword v25, v20, s[20:21] offset:20')
        a.i('s_endpgm')
    kernels = [(main, nvgpr)]
    if comb == 'launch2':
        a.raw('.globl combine_kernel')
        a.raw('.p2align 8')
        a.raw('.type combine_kernel,@function')
        a.raw('combine_kernel:')
        a.i('s_cmp_ge_u32 s2, %d' % NH)
        a.i('s_cbranch_scc1 L_end2')
        a.i('s_load_dwordx2 s[16:17], s[0:1], 48')
        a.i('s_load_dwordx2 s[20:21], s[0:1], 64')
        a.i('s_mov_b32 %s, s2' % sr(sHEAD))
        a.i('s_mul_i32 %s, %s, %d' % (sr(sT0), sr(sHEAD), S * 1024))
        a.i('v_lshlrev_b32 %s, 4, v0' % vr(vOFF))
        a.i('v_add_u32 %s, %s, %s' % (vr(vOFF), sr(sT0), vr(vOFF)))
        a.i('s_waitcnt lgkmcnt(0)')
        for s in range(S):
            if s and s % 4 == 0:
                a.i('v_add_u32 %s, 4096, %s' % (vr(vOFF), vr(vOFF)))
            a.i('global_load_dwordx4 %s, %s, %s offset:%d' % (vr(vBUF + 4 * s, 4), vr(vOFF), sr(sWS, 2), 1024 * (s % 4)))
        a.i('s_waitcnt vmcnt(0)')
        combine_partials(a, vBUF, S, t0)
        store_out()
        a.label('L_end2')
        a.i('s_endpgm')
        kernels.append(('combine_kernel', vBUF + 4 * S))
    a.raw('.section .rodata,"a"')
    for (kn, nv) in kernels:
        a.raw('.p2align 6')
        a.raw('.amdhsa_kernel %s' % kn)
        a.raw('  .amdhsa_next_free_vgpr %d' % nv)
        a.raw('  .amdhsa_next_free_sgpr %d' % (56 if args.stamp else 40))
        a.raw('  .amdhsa_accum_offset %d' % ((nv + 3) // 4 * 4))
        a.raw('  .amdhsa_group_segment_fixed_size 0')
        a.raw('  .amdhsa_kernarg_size 72')
        a.raw('  .amdhsa_user_sgpr_count 2')
        a.raw('  .amdhsa_user_sgpr_kernarg_segment_ptr 1')
        a.raw('  .amdhsa_system_sgpr_workgroup_id_x 1')
        a.raw('  .amdhsa_float_denorm_mode_32 3')
        a.raw('.end_amdhsa_kernel')
    return a.text()

def build(path_s):
    sys.path.insert(0, 'cdna_kernels')
    from cdna_launch import with_harness_metadata, address_register_problem, launch_list_of, launch_list_kernel_names
    asm = open(path_s).read()
    h = path_s[:-2] + '.h.s'
    open(h, 'w').write(with_harness_metadata(asm, KN + '_kernel', 9, launch_lists=True))
    co = path_s[:-2] + '.co'
    r = subprocess.run(['clang', '-x', 'assembler', '-target', 'amdgcn-amd-amdhsa', '-mcpu=gfx950', h, '-o', co], capture_output=True, text=True)
    os.unlink(h)
    if r.returncode:
        print(r.stderr); sys.exit(1)
    launches = launch_list_of(asm, True)
    prob = address_register_problem(co, KN + '_kernel', None if launches is None else launch_list_kernel_names(launches))
    if prob:
        print(prob); sys.exit(1)

if __name__ == '__main__':
    ap = argparse.ArgumentParser()
    ap.add_argument('-o', required=True)
    ap.add_argument('--split', type=int, default=1)
    ap.add_argument('--waves', type=int, default=16)
    ap.add_argument('--depth', type=int, default=2)
    ap.add_argument('--pol', default='')
    ap.add_argument('--order', default='inter')
    ap.add_argument('--map', default='hs')
    ap.add_argument('--comb', default='atomic')
    ap.add_argument('--noc', action='store_true')
    ap.add_argument('--align', action='store_true')
    ap.add_argument('--stamp', action='store_true')
    ap.add_argument('--diag', type=int, default=None)
    ap.add_argument('--diagmask', type=int, default=7)
    ap.add_argument('--trace', action='store_true')
    ap.add_argument('--skew', type=int, default=0)
    ap.add_argument('--group', type=int, default=1)
    args = ap.parse_args()
    txt = gen(args)
    open(args.o + '.s', 'w').write(txt)
    build(args.o + '.s')
    d, n = os.path.split(args.o)
    mf = os.path.join(d, 'manifest.txt')
    lines = [l for l in (open(mf).read().split('\n') if os.path.exists(mf) else []) if l and not l.startswith(n + '|')]
    lines += [n + '|' + l for l in txt.split('\n') if l.startswith('; @launch')]
    open(mf, 'w').write('\n'.join(lines) + '\n')
    print('built', args.o)
```

```python
import argparse, os, sys, struct
from asmlib import Asm
from gen import HDR, KN, build, fbits, CS, NEGBIG, MASKC, vr, sr

NH = 128
NTILE = 512
R = 8

class VMQ:
    def __init__(self, a):
        self.a = a; self.q = []
    def issue(self, tag):
        self.q.append(tag)
    def wait(self, tag):
        if tag not in self.q:
            return
        last = max(i for i, t in enumerate(self.q) if t == tag)
        n = len(self.q) - 1 - last
        assert n <= 63
        self.a.i('s_waitcnt vmcnt(%d)' % n)
        self.q = self.q[last + 1:]
    def copy(self):
        c = VMQ(self.a); c.q = list(self.q); return c

def gen(args):
    D, NS = args.depth, args.ns
    W = 4
    U = 4
    ND = NTILE - R * NS
    pol = (' ' + args.pol.replace('+', ' ')) if args.pol else ''
    full = not args.noc
    NWG = NH * R // W
    vOFF, vM, vL = 1, 2, 3
    vQ, vS, vACC, vT = 4, 8, 12, 20
    vMX, vAL, vP, vX = 28, 29, 30, 31
    vTK = 32
    vONE, vCNT, vFL = 36, 37, 38
    vBUF = 40
    nvgpr = max(vBUF + 32 * D, vBUF + 32)
    assert D <= 4
    sQ, sK, sV, sKT, sVT, sMASK, sOUT, sDBG, sWS = 4, 6, 8, 10, 12, 14, 16, 18, 20
    sHEAD, sROLE, sWAVE = 22, 23, 3
    srdK, srdV = 24, 28
    sOFF, sCNT, sT0, sT1, sT2, sTK, sBIT, sNDYN = 32, 33, 34, 35, 36, 37, 38, 39
    WS_CNT = 0x100000
    a = Asm()
    vm = VMQ(a)
    main = KN + '_kernel'
    a.raw(HDR.rstrip('\n'))
    a.raw('; generated: gen2 ' + ' '.join(sys.argv[1:]))
    a.raw('; @launch grid=(%d,1,1) block=(%d,1,1) lds=0' % (NWG, 64 * W))
    a.raw('.amdgcn_target "amdgcn-amd-amdhsa--gfx950"')
    a.raw('.text')
    a.raw('.globl %s' % main)
    a.raw('.p2align 8')
    a.raw('.type %s,@function' % main)
    a.raw(main + ':')
    a.i('s_cmp_ge_u32 s2, %d' % NWG)
    a.i('s_cbranch_scc1 L_end')
    a.i('s_load_dwordx16 s[4:19], s[0:1], 0')
    a.i('s_load_dwordx2 s[20:21], s[0:1], 64')
    if args.stamp:
        a.i('s_memrealtime s[40:41]')
        a.i('s_getreg_b32 s46, hwreg(HW_REG_XCC_ID)')
        a.i('s_getreg_b32 s47, hwreg(HW_REG_HW_ID)')
    a.i('v_lshrrev_b32 %s, 6, v0' % vr(vX))
    a.i('v_and_b32 v0, 63, v0')
    a.i('v_readfirstlane_b32 %s, %s' % (sr(sWAVE), vr(vX)))
    a.i('v_lshlrev_b32 %s, 4, v0' % vr(vOFF))
    a.i('v_and_b32 %s, 0xf0, %s' % (vr(vX), vr(vOFF)))
    a.i('s_and_b32 %s, s2, 7' % sr(sROLE))
    a.i('s_lshr_b32 %s, s2, 3' % sr(sT0))
    if args.hmap == 0:
        a.i('s_lshl_b32 %s, %s, 2' % (sr(sT0), sr(sT0)))
        a.i('s_add_u32 %s, %s, %s' % (sr(sHEAD), sr(sT0), sr(sWAVE)))
    else:
        a.i('s_lshl_b32 %s, %s, 5' % (sr(sT1), sr(sWAVE)))
        a.i('s_add_u32 %s, %s, %s' % (sr(sHEAD), sr(sT0), sr(sT1)))
    a.i('s_lshl_b32 %s, %s, 8' % (sr(sT2), sr(sHEAD)))
    a.i('v_add_u32 %s, %s, %s' % (vr(vX), sr(sT2), vr(vX)))
    a.i('s_add_u32 %s, %s, 0x%x' % (sr(sT2), sr(sT2), WS_CNT))
    a.i('v_mov_b32 %s, %s' % (vr(vCNT), sr(sT2)))
    a.i('v_mov_b32 %s, 1' % vr(vONE))
    a.i('s_lshl_b32 %s, %s, 21' % (sr(sT0), sr(sHEAD)))
    GR = args.gran
    if args.rmix:
        a.i('s_mul_i32 %s, %s, %d' % (sr(sT1), sr(sHEAD), args.rmix))
        a.i('s_add_u32 %s, %s, %s' % (sr(sT1), sr(sT1), sr(sROLE)))
        a.i('s_and_b32 %s, %s, 7' % (sr(sT1), sr(sT1)))
        a.i('s_mul_i32 %s, %s, %d' % (sr(sOFF), sr(sT1), 4096 * GR))
    else:
        a.i('s_mul_i32 %s, %s, %d' % (sr(sOFF), sr(sROLE), 4096 * GR))
    sROT = 54
    if args.rot:
        a.i('s_mul_i32 s%d, %s, %d' % (sROT, sr(sHEAD), args.rot))
        a.i('s_and_b32 s%d, s%d, 63' % (sROT, sROT))
        a.i('s_lshl_b32 s%d, s%d, 15' % (sROT, sROT))
        a.i('s_add_u32 %s, %s, s%d' % (sr(sOFF), sr(sOFF), sROT))
        a.i('s_and_b32 %s, %s, 0x1fffff' % (sr(sOFF), sr(sOFF)))
    def adv_static(t):
        inc = 4096 if (t % GR) != GR - 1 else (R * GR - (GR - 1)) * 4096
        a.i('s_add_u32 %s, %s, %d' % (sr(sOFF), sr(sOFF), inc))
        if args.rot:
            a.i('s_and_b32 %s, %s, 0x1fffff' % (sr(sOFF), sr(sOFF)))
    a.i('s_and_b32 %s, %s, 31' % (sr(sBIT), sr(sHEAD)))
    a.i('s_lshl_b32 %s, 1, %s' % (sr(sBIT), sr(sBIT)))
    a.i('s_lshr_b32 %s, %s, 5' % (sr(sT2), sr(sHEAD)))
    a.i('s_lshl_b32 %s, %s, 2' % (sr(sT2), sr(sT2)))
    a.i('v_mov_b32 %s, %s' % (vr(vFL), sr(sT2)))
    a.i('s_mov_b32 %s, 0' % sr(sNDYN))
    a.i('s_waitcnt lgkmcnt(0)')
    a.i('global_load_dwordx4 %s, %s, %s' % (vr(vQ, 4), vr(vX), sr(sQ, 2))); vm.issue('q')
    for (srd, p) in ((srdK, sK), (srdV, sV)):
        a.i('s_add_u32 %s, %s, %s' % (sr(srd), sr(p), sr(sT0)))
        a.i('s_addc_u32 %s, %s, 0' % (sr(srd + 1), sr(p + 1)))
        a.i('s_and_b32 %s, %s, 0xffff' % (sr(srd + 1), sr(srd + 1)))
        a.i('s_mov_b32 %s, %d' % (sr(srd + 2), 1 << 21))
        a.i('s_mov_b32 %s, 0x20000' % sr(srd + 3))
    a.i('s_cmp_eq_u32 %s, 0' % sr(sROLE))
    a.i('s_cbranch_scc0 L_notree_ld')
    a.i('v_mov_b32 %s, 0' % vr(vS))
    a.i('v_mov_b32 %s, 0' % vr(vS + 1))
    a.i('s_mov_b64 exec, 1')
    a.i('global_atomic_swap_x2 %s, %s, %s, %s sc0' % (vr(vS + 2, 2), vr(vCNT), vr(vS, 2), sr(sWS, 2)))
    a.i('s_mov_b64 exec, -1')
    a.i('global_load_dwordx4 %s, %s, %s' % (vr(vT, 4), vr(vX), sr(sKT, 2)))
    a.i('global_load_dwordx4 %s, %s, %s' % (vr(vT + 4, 4), vr(vX), sr(sVT, 2)))
    a.i('s_lshr_b32 %s, %s, 5' % (sr(sT2), sr(sHEAD)))
    a.i('s_lshl_b32 %s, %s, 1' % (sr(sT2), sr(sT2)))
    a.i('v_mov_b32 %s, %s' % (vr(vMX), sr(sT2)))
    a.i('global_load_ushort %s, %s, %s' % (vr(vMX), vr(vMX), sr(sMASK, 2)))
    a.label('L_notree_ld')
    vm.issue('pre')

    def K(d): return vBUF + 32 * d
    def V(d): return vBUF + 32 * d + 16
    def loads(base, srd, tag, q):
        for u in range(4):
            off = ' offset:%d' % (1024 * u) if u else ''
            a.i('buffer_load_dwordx4 %s, %s, %s, %s offen%s%s' % (vr(base + 4 * u, 4), vr(vOFF), sr(srd, 4), sr(sOFF), off, pol))
            q.issue(tag)
    vm.q = ['pre']
    for d in range(D):
        loads(K(d), srdK, 'K%d' % d, vm)
        loads(V(d), srdV, 'V%d' % d, vm)
        adv_static(d)
    if args.dummy in (8, 9, 10):
        a.i('s_lshl_b32 %s, s2, 2' % sr(sT2))
        a.i('s_add_u32 %s, %s, %s' % (sr(sT2), sr(sT2), sr(sWAVE)))
        a.i('s_lshl_b32 %s, %s, 10' % (sr(sT2), sr(sT2)))
        a.i('s_add_u32 %s, %s, 0x4000000' % (sr(sT2), sr(sT2)))
        a.i('v_lshlrev_b32 %s, %d, v0' % (vr(vTK + 7), 3 if args.dummy == 9 else 4))
        a.i('v_add_u32 %s, %s, %s' % (vr(vTK + 7), sr(sT2), vr(vTK + 7)))
    if args.warm == 1:
        a.i('global_load_dword %s, %s, %s offset:64' % (vr(vTK + 3), vr(vCNT), sr(sWS, 2)))
    elif args.warm == 2:
        a.i('s_mov_b64 exec, 1')
        a.i('global_store_dword %s, %s, %s offset:64' % (vr(vCNT), vr(vONE), sr(sWS, 2)))
        a.i('s_mov_b64 exec, -1')
    elif args.warm == 3:
        a.i('s_mov_b64 exec, 1')
        a.i('global_store_dword %s, %s, %s offset:64 sc1' % (vr(vCNT), vr(vONE), sr(sWS, 2)))
        a.i('s_mov_b64 exec, -1')
    elif args.warm == 4:
        a.i('global_load_dword %s, %s, %s offset:64 sc1' % (vr(vTK + 3), vr(vCNT), sr(sWS, 2)))
    a.i('v_mov_b32 %s, 0x%x' % (vr(vM), NEGBIG))
    a.i('v_mov_b32 %s, 0' % vr(vL))
    for j in range(8):
        a.i('v_mov_b32 %s, 0' % vr(vACC + j))
    vm.wait('pre')
    if args.stamp:
        a.i('s_memrealtime s[42:43]')
    a.i('s_cmp_eq_u32 %s, 0' % sr(sROLE))
    a.i('s_cbranch_scc0 L_notree')
    a.i('v_mov_b32 %s, %s' % (vr(vS + 1), sr(sBIT)))
    a.i('s_mov_b64 exec, 1')
    a.i('global_atomic_or %s, %s, %s' % (vr(vFL), vr(vS + 1), sr(sDBG, 2)))
    a.i('s_mov_b64 exec, -1')
    for j in range(4):
        a.i('v_dot2_f32_bf16 %s, %s, %s, %s' % (vr(vS), vr(vT + j), vr(vQ + j), '0' if j == 0 else vr(vS)))
    for r in (8, 4, 2, 1):
        a.i('v_add_f32_dpp %s, %s, %s row_ror:%d row_mask:0xf bank_mask:0xf' % (vr(vS), vr(vS), vr(vS), r))
    a.i('v_lshlrev_b32 %s, 16, %s' % (vr(vMX), vr(vMX)))
    a.i('v_sub_f32 %s, 1.0, %s' % (vr(vMX), vr(vMX)))
    a.i('v_mul_f32 %s, 0x%x, %s' % (vr(vMX), MASKC, vr(vMX)))
    a.i('v_mul_f32 %s, 0x%x, %s' % (vr(vS), CS, vr(vS)))
    a.i('s_mov_b64 exec, 0xffff')
    a.i('v_add_f32 %s, %s, %s' % (vr(vM), vr(vS), vr(vMX)))
    for j in range(4):
        a.i('v_lshlrev_b32 %s, 16, %s' % (vr(vACC + 2 * j), vr(vT + 4 + j)))
        a.i('v_and_b32 %s, 0xffff0000, %s' % (vr(vACC + 2 * j + 1), vr(vT + 4 + j)))
    a.i('s_mov_b64 exec, 0xf')
    a.i('v_mov_b32 %s, 1.0' % vr(vL))
    a.i('s_mov_b64 exec, -1')
    a.label('L_notree')
    a.i('s_nop 1')

    BC = [0, 8, 4, 12]
    def qk(d, q):
        k = K(d)
        q.wait('K%d' % d)
        if full:
            for j in range(4):
                for u in range(4):
                    a.i('v_dot2_f32_bf16 %s, %s, %s, %s' % (vr(vS + u), vr(k + 4 * u + j), vr(vQ + j), '0' if j == 0 else vr(vS + u)))
    def softmax():
        if not full: return
        s0, s1, s2, s3 = [vr(vS + u) for u in range(4)]
        dp = lambda dst, src, ctl, bank: a.i('v_add_f32_dpp %s, %s, %s %s row_mask:0xf bank_mask:0x%x' % (dst, src, src, ctl, bank))
        dp(s0, s0, 'row_ror:8', 0x3); dp(s2, s2, 'row_ror:8', 0x3)
        dp(s0, s1, 'row_ror:8', 0xc); dp(s2, s3, 'row_ror:8', 0xc)
        dp(s0, s0, 'row_half_mirror', 0x5); dp(s0, s2, 'row_half_mirror', 0xa)
        dp(s0, s0, 'quad_perm:[1,0,3,2]', 0xf); dp(s0, s0, 'quad_perm:[2,3,0,1]', 0xf)
        a.i('v_mul_f32 %s, 0x%x, %s' % (s0, CS, s0))
        a.i('v_max_f32_dpp %s, %s, %s row_ror:4 row_mask:0xf bank_mask:0xf' % (vr(vMX), s0, s0))
        a.i('v_max_f32_dpp %s, %s, %s row_ror:8 row_mask:0xf bank_mask:0xf' % (vr(vMX), vr(vMX), vr(vMX)))
        a.i('v_max_f32 %s, %s, %s' % (vr(vMX), vr(vM), vr(vMX)))
        a.i('v_sub_f32 %s, %s, %s' % (vr(vAL), vr(vM), vr(vMX)))
        a.i('v_sub_f32 %s, %s, %s' % (vr(vP), s0, vr(vMX)))
        a.i('v_exp_f32 %s, %s' % (vr(vAL), vr(vAL)))
        a.i('v_exp_f32 %s, %s' % (vr(vP), vr(vP)))
        a.i('v_mov_b32 %s, %s' % (vr(vM), vr(vMX)))
        for j in range(8):
            a.i('v_mul_f32 %s, %s, %s' % (vr(vACC + j), vr(vAL), vr(vACC + j)))
        a.i('v_fma_f32 %s, %s, %s, %s' % (vr(vL), vr(vL), vr(vAL), vr(vP)))
    def pv(d, q):
        v = V(d)
        q.wait('V%d' % d)
        if full:
            for u in range(4):
                for j in range(4):
                    a.i('v_lshlrev_b32 %s, 16, %s' % (vr(vT + 2 * j), vr(v + 4 * u + j)))
                    a.i('v_and_b32 %s, 0xffff0000, %s' % (vr(vT + 2 * j + 1), vr(v + 4 * u + j)))
                for j in range(8):
                    a.i('v_fmac_f32_dpp %s, %s, %s row_newbcast:%d row_mask:0xf bank_mask:0xf' % (vr(vACC + j), vr(vP), vr(vT + j), BC[u]))
    def req_ticket(d, q):
        a.i('s_mov_b64 exec, 1')
        a.i('global_atomic_add %s, %s, %s, %s sc0' % (vr(vTK + d), vr(vCNT), vr(vONE), sr(sWS, 2)))
        a.i('s_mov_b64 exec, -1')
        q.issue('T%d' % d)
    vTR, sTI = 39, 55
    def trace():
        if args.trace:
            a.i('s_memrealtime s[50:51]')
            a.i('s_waitcnt lgkmcnt(0)')
            a.i('s_mov_b32 m0, s%d' % sTI)
            a.i('s_nop 3')
            a.i('v_writelane_b32 %s, s50, m0' % vr(vTR))
            a.i('s_add_u32 s%d, s%d, 1' % (sTI, sTI))
    if args.trace:
        a.i('v_mov_b32 %s, 0' % vr(vTR))
        a.i('s_mov_b32 s%d, 0' % sTI)
    drains = []
    tcur = [0]
    def step(d, src, req, q, lbl=None):
        if args.dummy and src == 'static' and not req:
            a.i('s_mov_b64 exec, 1')
            if args.dummy == 1:
                a.i('global_atomic_add %s, %s, %s, %s offset:64 sc0' % (vr(vTK + 3), vr(vCNT), vr(vONE), sr(sWS, 2)))
            elif args.dummy == 2:
                a.i('global_load_dword %s, %s, %s offset:64 sc1' % (vr(vTK + 3), vr(vCNT), sr(sWS, 2)))
            elif args.dummy == 3:
                a.i('global_atomic_add %s, %s, %s offset:64' % (vr(vCNT), vr(vONE), sr(sWS, 2)))
            elif args.dummy == 4:
                a.i('global_store_dword %s, %s, %s offset:64' % (vr(vCNT), vr(vONE), sr(sWS, 2)))
            elif args.dummy == 5:
                a.i('global_store_dword %s, %s, %s offset:64 sc1' % (vr(vCNT), vr(vONE), sr(sWS, 2)))
            elif args.dummy == 6:
                a.i('global_atomic_add %s, %s, %s, %s offset:64 sc0 sc1' % (vr(vTK + 3), vr(vCNT), vr(vONE), sr(sWS, 2)))
            elif args.dummy == 7:
                a.i('global_atomic_add %s, %s, %s, %s offset:64 sc0 nt' % (vr(vTK + 3), vr(vCNT), vr(vONE), sr(sWS, 2)))
            a.i('s_mov_b64 exec, -1')
            if args.dummy in (8, 9, 10):
                if args.dummy == 8:
                    a.i('global_store_dwordx4 %s, %s, %s sc1' % (vr(vTK + 7), vr(vACC, 4), sr(sWS, 2)))
                elif args.dummy == 9:
                    a.i('global_store_dwordx2 %s, %s, %s sc1' % (vr(vTK + 7), vr(vACC, 2), sr(sWS, 2)))
                else:
                    a.i('s_mov_b64 exec, 0xff')
                    a.i('global_store_dwordx4 %s, %s, %s sc1' % (vr(vTK + 7), vr(vACC, 4), sr(sWS, 2)))
                    a.i('s_mov_b64 exec, -1')
            q.issue('X')
        if args.ahead == 1:
            if req:
                req_ticket((d + 1) % D, q)
            qk(d, q)
            if src == 'ticket':
                q.wait('T%d' % d)
                a.i('v_readfirstlane_b32 %s, %s' % (sr(sTK), vr(vTK + d)))
        else:
            q.wait('K%d' % d)
            if src == 'ticket':
                q.wait('T%d' % d)
                a.i('v_readfirstlane_b32 %s, %s' % (sr(sTK), vr(vTK + d)))
            if req:
                req_ticket(d, q)
            qk(d, q)
        if src == 'ticket':
            a.i('s_cmp_ge_u32 %s, %d' % (sr(sTK), ND))
            a.i('s_cbranch_scc1 %s' % lbl)
            drains.append((lbl, d, q.copy()))
            a.i('s_add_u32 %s, %s, %d' % (sr(sTK), sr(sTK), R * NS))
            a.i('s_lshl_b32 %s, %s, 12' % (sr(sOFF), sr(sTK)))
            if args.rot:
                a.i('s_add_u32 %s, %s, s%d' % (sr(sOFF), sr(sOFF), sROT))
                a.i('s_and_b32 %s, %s, 0x1fffff' % (sr(sOFF), sr(sOFF)))
            if args.stamp:
                a.i('s_add_u32 %s, %s, 1' % (sr(sNDYN), sr(sNDYN)))
        if src:
            loads(K(d), srdK, 'K%d' % d, q)
        softmax()
        pv(d, q)
        if src:
            loads(V(d), srdV, 'V%d' % d, q)
            if src == 'static':
                adv_static(tcur[0] + D)

    A = 1 if args.ahead == 1 else D
    n_plain = NS - D - A - 1
    assert n_plain >= D
    nloop, rem = divmod(n_plain, D)
    if args.dummy:
        pass
    q0 = list(vm.q)
    a.i('s_mov_b32 %s, %d' % (sr(sCNT), nloop))
    if args.align: a.raw('.p2align 6')
    a.label('L_sloop')
    assert D % GR == 0 or GR == 1
    for d in range(D):
        tcur[0] = d
        step(d, 'static', False, vm)
    assert args.dummy or vm.q == q0, (vm.q, q0)
    trace()
    a.i('s_sub_u32 %s, %s, 1' % (sr(sCNT), sr(sCNT)))
    if args.stamp and not args.trace:
        a.i('s_cmp_eq_u32 %s, %d' % (sr(sCNT), nloop - 16 // D))
        a.i('s_cbranch_scc0 L_nomid0')
        a.i('s_memrealtime s[52:53]')
        a.label('L_nomid0')
        a.i('s_cmp_eq_u32 %s, %d' % (sr(sCNT), nloop - 40 // D))
        a.i('s_cbranch_scc0 L_nomid')
        a.i('s_memrealtime s[50:51]')
        a.label('L_nomid')
    a.i('s_cmp_lg_u32 %s, 0' % sr(sCNT))
    a.i('s_cbranch_scc1 L_sloop')
    i = nloop * D
    for _ in range(rem):
        tcur[0] = i
        step(i % D, 'static', False, vm); i += 1
    a.i('global_load_dword %s, %s, %s sc1' % (vr(vX), vr(vFL), sr(sDBG, 2))); vm.issue('F')
    tcur[0] = i
    step(i % D, 'static', False, vm); i += 1
    vm.wait('F')
    a.i('v_readfirstlane_b32 %s, %s' % (sr(sT0), vr(vX)))
    a.i('s_and_b32 %s, %s, %s' % (sr(sT0), sr(sT0), sr(sBIT)))
    a.i('s_cbranch_scc1 L_flag_ok')
    a.i('s_mov_b32 %s, 0x100000' % sr(sCNT))
    a.label('L_spin')
    a.i('s_sleep 4')
    a.i('global_load_dword %s, %s, %s sc1' % (vr(vX), vr(vFL), sr(sDBG, 2)))
    a.i('s_waitcnt vmcnt(0)')
    a.i('v_readfirstlane_b32 %s, %s' % (sr(sT0), vr(vX)))
    a.i('s_and_b32 %s, %s, %s' % (sr(sT0), sr(sT0), sr(sBIT)))
    a.i('s_cbranch_scc1 L_flag_ok')
    a.i('s_sub_u32 %s, %s, 1' % (sr(sCNT), sr(sCNT)))
    a.i('s_cmp_lg_u32 %s, 0' % sr(sCNT))
    a.i('s_cbranch_scc1 L_spin')
    a.label('L_flag_ok')
    assert i == NS - D - A
    for _ in range(A):
        tcur[0] = i
        step(i % D, 'static', True, vm); i += 1
    self_ndyn0 = i
    d0 = i % D
    q1 = list(vm.q)
    if args.align: a.raw('.p2align 6')
    a.label('L_dloop')
    for j in range(D):
        d = (d0 + j) % D
        step(d, 'ticket', True, vm, 'L_drain%d' % d)
    assert vm.q == q1, (vm.q, q1)
    trace()
    a.i('s_branch L_dloop')
    for n, (lbl, d, q) in enumerate(drains):
        a.label(lbl)
        softmax()
        pv(d, q)
        for j in range(1, D):
            dd = (d + j) % D
            qk(dd, q); softmax(); pv(dd, q)
        if n != len(drains) - 1:
            a.i('s_branch L_fin')
    a.label('L_fin')
    if args.trace:
        trace()
        a.i('s_mul_i32 s48, s2, %d' % W)
        a.i('s_add_u32 s48, s48, %s' % sr(sWAVE))
        a.i('s_lshl_b32 s48, s48, 8')
        a.i('s_add_u32 s48, s48, 0x2000000')
        a.i('v_lshlrev_b32 v20, 2, v0')
        a.i('v_add_u32 v20, s48, v20')
        a.i('global_store_dword v20, %s, s[20:21]' % vr(vTR))
    if args.stamp:
        a.i('s_memrealtime s[44:45]')
        a.i('s_waitcnt lgkmcnt(0)')
        a.i('s_mul_i32 s48, s2, %d' % W)
        a.i('s_add_u32 s48, s48, %s' % sr(sWAVE))
        a.i('s_lshl_b32 s48, s48, 5')
        a.i('s_add_u32 s48, s48, 0x1000000')
        a.i('v_mov_b32 v20, s40')
        a.i('v_mov_b32 v21, s42')
        a.i('v_mov_b32 v22, s44')
        a.i('v_mov_b32 v23, s46')
        a.i('v_mov_b32 v24, s47')
        a.i('v_mov_b32 v25, s48')
        a.i('v_mov_b32 v26, %s' % sr(sNDYN))
        a.i('s_mov_b64 exec, 1')
        a.i('global_store_dwordx4 v25, v[20:23], s[20:21]')
        a.i('global_store_dword v25, v24, s[20:21] offset:16')
        a.i('s_sub_u32 s50, s50, s52')
        a.i('v_mov_b32 v27, s50')
        a.i('global_store_dwordx2 v25, v[26:27], s[20:21] offset:24')
        a.i('s_mov_b64 exec, -1')
        a.i('s_nop 1')
    t0, t1 = vT, vT + 1
    a.i('v_add_f32_dpp %s, %s, %s row_ror:4 row_mask:0xf bank_mask:0xf' % (vr(vL), vr(vL), vr(vL)))
    a.i('v_mov_b32 %s, %s' % (vr(t0), vr(vM)))
    a.i('v_mov_b32 %s, %s' % (vr(t1), vr(vM)))
    a.i('v_add_f32_dpp %s, %s, %s row_ror:8 row_mask:0xf bank_mask:0xf' % (vr(vL), vr(vL), vr(vL)))
    a.i('v_permlane32_swap_b32 %s, %s' % (vr(t0), vr(t1)))
    a.i('v_max_f32 %s, %s, %s' % (vr(t0), vr(t0), vr(t1)))
    a.i('v_mov_b32 %s, %s' % (vr(t1), vr(t0)))
    a.i('v_permlane16_swap_b32 %s, %s' % (vr(t0), vr(t1)))
    a.i('v_max_f32 %s, %s, %s' % (vr(vMX), vr(t0), vr(t1)))
    a.i('v_sub_f32 %s, %s, %s' % (vr(vAL), vr(vM), vr(vMX)))
    a.i('v_exp_f32 %s, %s' % (vr(vAL), vr(vAL)))
    a.i('s_lshl_b32 %s, %s, 13' % (sr(sT0), sr(sHEAD)))
    a.i('v_add_u32 %s, %s, %s' % (vr(vOFF), sr(sT0), vr(vOFF)))
    a.i('s_lshl_b32 %s, %s, 10' % (sr(sT1), sr(sROLE)))
    a.i('v_add_u32 %s, %s, %s' % (vr(vX), sr(sT1), vr(vOFF)))
    a.i('v_mul_f32 %s, %s, %s' % (vr(vL), vr(vAL), vr(vL)))
    for j in range(8):
        a.i('v_mul_f32 %s, %s, %s' % (vr(vACC + j), vr(vAL), vr(vACC + j)))
    a.i('v_mov_b32 %s, %s' % (vr(t1), vr(vL)))
    a.i('v_permlane32_swap_b32 %s, %s' % (vr(vL), vr(t1)))
    for j in range(4):
        a.i('v_permlane32_swap_b32 %s, %s' % (vr(vACC + 2 * j), vr(vACC + 2 * j + 1)))
    a.i('v_add_f32 %s, %s, %s' % (vr(vL), vr(vL), vr(t1)))
    for j in range(4):
        a.i('v_add_f32 %s, %s, %s' % (vr(vACC + 2 * j), vr(vACC + 2 * j), vr(vACC + 2 * j + 1)))
    a.i('v_mov_b32 %s, %s' % (vr(t1), vr(vL)))
    a.i('v_permlane16_swap_b32 %s, %s' % (vr(vACC + 0), vr(vACC + 2)))
    a.i('v_permlane16_swap_b32 %s, %s' % (vr(vACC + 4), vr(vACC + 6)))
    a.i('v_permlane16_swap_b32 %s, %s' % (vr(vL), vr(t1)))
    a.i('v_add_f32 %s, %s, %s' % (vr(vACC + 0), vr(vACC + 0), vr(vACC + 2)))
    a.i('v_add_f32 %s, %s, %s' % (vr(vACC + 1), vr(vACC + 4), vr(vACC + 6)))
    a.i('v_add_f32 %s, %s, %s' % (vr(vACC + 3), vr(vL), vr(t1)))
    a.i('v_mov_b32 %s, %s' % (vr(vACC + 2), vr(vMX)))
    a.i('global_store_dwordx4 %s, %s, %s sc1' % (vr(vX), vr(vACC, 4), sr(sWS, 2)))
    a.i('s_waitcnt vmcnt(0)')
    a.i('s_mov_b64 exec, 1')
    a.i('global_atomic_add %s, %s, %s, %s offset:4 sc0' % (vr(vAL), vr(vCNT), vr(vONE), sr(sWS, 2)))
    a.i('s_waitcnt vmcnt(0)')
    a.i('v_readfirstlane_b32 %s, %s' % (sr(sT2), vr(vAL)))
    a.i('s_mov_b64 exec, -1')
    a.i('s_cmp_eq_u32 %s, %d' % (sr(sT2), R - 1))
    a.i('s_cbranch_scc0 L_end2')
    P = vBUF
    for s in range(R):
        if s == 4:
            a.i('v_add_u32 %s, 4096, %s' % (vr(vOFF), vr(vOFF)))
        a.i('global_load_dwordx4 %s, %s, %s offset:%d sc1' % (vr(P + 4 * s, 4), vr(vOFF), sr(sWS, 2), 1024 * (s % 4)))
    a.i('v_and_b32 %s, 15, v0' % vr(vX))
    a.i('v_lshlrev_b32 %s, 4, %s' % (vr(vX), vr(vX)))
    a.i('v_lshrrev_b32 %s, 4, v0' % vr(vP))
    a.i('v_lshl_add_u32 %s, %s, 2, %s' % (vr(vX), vr(vP), vr(vX)))
    a.i('s_lshl_b32 %s, %s, 8' % (sr(sT0), sr(sHEAD)))
    a.i('v_add_u32 %s, %s, %s' % (vr(vX), sr(sT0), vr(vX)))
    a.i('s_waitcnt vmcnt(0)')
    mx, L, o0, o1 = vMX, vL, vACC, vACC + 1
    a.i('v_max3_f32 %s, %s, %s, %s' % (vr(mx), vr(P + 2), vr(P + 6), vr(P + 10)))
    a.i('v_max3_f32 %s, %s, %s, %s' % (vr(vAL), vr(P + 14), vr(P + 18), vr(P + 22)))
    a.i('v_max3_f32 %s, %s, %s, %s' % (vr(mx), vr(mx), vr(P + 26), vr(P + 30)))
    a.i('v_max_f32 %s, %s, %s' % (vr(mx), vr(mx), vr(vAL)))
    for s in range(R):
        a.i('v_sub_f32 %s, %s, %s' % (vr(P + 4 * s + 2), vr(P + 4 * s + 2), vr(mx)))
    for s in range(R):
        a.i('v_exp_f32 %s, %s' % (vr(P + 4 * s + 2), vr(P + 4 * s + 2)))
    for s in range(R):
        fs = vr(P + 4 * s + 2)
        if s == 0:
            a.i('v_mul_f32 %s, %s, %s' % (vr(L), fs, vr(P + 3)))
            a.i('v_mul_f32 %s, %s, %s' % (vr(o0), fs, vr(P + 0)))
            a.i('v_mul_f32 %s, %s, %s' % (vr(o1), fs, vr(P + 1)))
        else:
            a.i('v_fmac_f32 %s, %s, %s' % (vr(L), fs, vr(P + 4 * s + 3)))
            a.i('v_fmac_f32 %s, %s, %s' % (vr(o0), fs, vr(P + 4 * s + 0)))
            a.i('v_fmac_f32 %s, %s, %s' % (vr(o1), fs, vr(P + 4 * s + 1)))
    a.i('v_rcp_f32 %s, %s' % (vr(L), vr(L)))
    a.i('v_mul_f32 %s, %s, %s' % (vr(o0), vr(o0), vr(L)))
    a.i('v_mul_f32 %s, %s, %s' % (vr(o1), vr(o1), vr(L)))
    a.i('v_permlane32_swap_b32 %s, %s' % (vr(o0), vr(o1)))
    a.i('v_cvt_pk_bf16_f32 %s, %s, %s' % (vr(t0), vr(o0), vr(o1)))
    a.i('global_store_dword %s, %s, %s' % (vr(vX), vr(t0), sr(sOUT, 2)))
    a.label('L_end2')
    if args.stamp:
        a.i('s_waitcnt vmcnt(0)')
        a.i('s_memrealtime s[44:45]')
        a.i('s_waitcnt lgkmcnt(0)')
        a.i('v_mov_b32 v20, s44')
        a.i('v_mov_b32 v25, s48')
        a.i('s_mov_b64 exec, 1')
        a.i('global_store_dword v25, v20, s[20:21] offset:20')
    a.label('L_end')
    a.i('s_endpgm')
    a.raw('.section .rodata,"a"')
    a.raw('.p2align 6')
    a.raw('.amdhsa_kernel %s' % main)
    a.raw('  .amdhsa_next_free_vgpr %d' % nvgpr)
    a.raw('  .amdhsa_next_free_sgpr %d' % 56)
    a.raw('  .amdhsa_accum_offset %d' % ((nvgpr + 3) // 4 * 4))
    a.raw('  .amdhsa_group_segment_fixed_size 0')
    a.raw('  .amdhsa_kernarg_size 72')
    a.raw('  .amdhsa_user_sgpr_count 2')
    a.raw('  .amdhsa_user_sgpr_kernarg_segment_ptr 1')
    a.raw('  .amdhsa_system_sgpr_workgroup_id_x 1')
    a.raw('  .amdhsa_float_denorm_mode_32 3')
    a.raw('.end_amdhsa_kernel')
    return a.text()

def write(args, txt):
    open(args.o + '.s', 'w').write(txt)
    build(args.o + '.s')
    d, n = os.path.split(args.o)
    mf = os.path.join(d, 'manifest.txt')
    lines = [l for l in (open(mf).read().split('\n') if os.path.exists(mf) else []) if l and not l.startswith(n + '|')]
    lines += [n + '|' + l for l in txt.split('\n') if l.startswith('; @launch')]
    open(mf, 'w').write('\n'.join(lines) + '\n')
    print('built', args.o)

if __name__ == '__main__':
    ap = argparse.ArgumentParser()
    ap.add_argument('-o', required=True)
    ap.add_argument('--depth', type=int, default=2)
    ap.add_argument('--ns', type=int, default=48)
    ap.add_argument('--pol', default='nt')
    ap.add_argument('--hmap', type=int, default=0)
    ap.add_argument('--noc', action='store_true')
    ap.add_argument('--rot', type=int, default=0)
    ap.add_argument('--dummy', type=int, default=0)
    ap.add_argument('--warm', type=int, default=0)
    ap.add_argument('--rmix', type=int, default=0)
    ap.add_argument('--ahead', type=int, default=2)
    ap.add_argument('--trace', action='store_true')
    ap.add_argument('--gran', type=int, default=1)
    ap.add_argument('--align', action='store_true')
    ap.add_argument('--stamp', action='store_true')
    args = ap.parse_args()
    write(args, gen(args))
```

```python
import argparse, os, sys
from asmlib import Asm
from gen import HDR, KN, fbits, CS, NEGBIG, MASKC, vr, sr
from gen2 import VMQ, write

NH = 128
NTILE = 512
R = 8

DOC = """
Decode attention, one query per (batch, head): out = softmax(q.[K_cache;k_tree]/sqrt(128) + mask) . [V_cache;v_tree].
The kernel is HBM-bound (512 MiB read once), so everything is arranged around the load stream.

Work split.  256 workgroups x 4 waves, every wave independent (no barriers).  Wave w of workgroup g works on head
  4*(g>>3)+w with role g&7, so the 8 waves of a head sit in 8 consecutive workgroups.  A tile = 16 keys = 4 KiB of K or V;
  lane l loads 16 B: key (l>>4) of 4, dims 8*(l&15)..+7, four non-temporal 1-KiB loads per tile;
  a rolling window of N such loads is kept in flight per wave (8 register slots).
  * static part: role r owns runs of two tiles, interleaved over the roles (even roles get some more: second sequence).
    Pass 1 streams all static K tiles (scores -> LDS, running max), pass 2 streams the same V tiles with the known max.
  * dynamic part: the last tiles of every head are claimed in pairs through a per-head ticket counter (d_ws, atomics),
    processed K,V interleaved with an online softmax.  This evens out the different speeds of the compute dies.
  * the tree token initialises the state of role 0 (score incl. (1-mask)*-1e9, l = 1, acc = v_tree).
Combine.  Every wave reduces to (acc[128], max, sum), stores it write-through (sc1) into d_ws, waits, then bumps the
  head's arrival counter; the wave that arrives last loads the 8 partials (sc1) and writes the bf16 row.
Counters.  Role 0 zeroes the head's (ticket, arrival) pair at start and then sets the head's bit in d_debug; every wave
  reads that bit before its first ticket.  Nothing found in d_ws / d_out on entry is used.
Scores are kept in log2 units: s = (q.k) * log2(e)/sqrt(128), p = exp2(s - max).
"""

def gen(args):
    NSE, NSO = args.nse, args.nso
    W, D = 4, 2
    ZS = R * NSO + (R // 2) * (NSE - NSO)
    ND = NTILE - ZS
    NF = args.inflight
    assert 5 <= NF <= 7
    RB = 2
    assert ND % D == 0 and NSE >= NSO and NSE % RB == 0 and NSO % RB == 0 and NSE <= 64
    NP = ND // 2
    NA, NB = NSO // RB, (NSE - NSO) // RB
    pol = (' ' + args.pol.replace('+', ' ')) if args.pol else ''
    NWG = NH * R // W
    LDSW = 64 * 256
    vOFF, vM, vL = 1, 2, 3
    vQ, vS, vACC, vT = 4, 8, 12, 20
    vMX, vAL, vP, vX = 28, 29, 30, 31
    vTK, vONE, vCNT, vFL, vFV, vTR, vLDS, vM0 = 32, 33, 34, 35, 36, 37, 38, 39
    vP4 = 40
    vBUF = 44
    vOFF2 = 43
    nvgpr = vBUF + 32
    sQ, sK, sV, sKT, sVT, sMASK, sOUT, sDBG, sWS = 4, 6, 8, 10, 12, 14, 16, 18, 20
    sHEAD, sROLE, sWAVE = 22, 23, 3
    srdK, srdV, srdP = 24, 28, 56
    sOFF, sCNT, sT0, sT1, sT2, sTK, sBIT, sNDYN = 32, 33, 34, 35, 36, 37, 38, 39
    sINC, sSEG, sREM, sTI = 52, 53, 54, 55
    sA0, sB0, sNBR = 60, 61, 62
    sCUR, sNXT = 63, 64
    WS_CNT = 0x100000
    a = Asm()
    vm = VMQ(a)
    main = KN + '_kernel'
    a.raw(HDR.rstrip('\n'))
    a.raw('; generated: gen5 ' + ' '.join(x for x in sys.argv[1:]))
    for line in DOC.strip('\n').split('\n'):
        a.raw(('; ' + line).rstrip())
    a.raw('; @launch grid=(%d,1,1) block=(%d,1,1) lds=%d' % (NWG, 64 * W, W * LDSW))
    a.raw('.amdgcn_target "amdgcn-amd-amdhsa--gfx950"')
    a.raw('.text')
    a.raw('.globl %s' % main)
    a.raw('.p2align 8')
    a.raw('.type %s,@function' % main)
    a.raw(main + ':')
    a.i('s_cmp_ge_u32 s2, %d' % NWG)
    a.i('s_cbranch_scc1 L_end')
    a.i('s_load_dwordx16 s[4:19], s[0:1], 0')
    a.i('s_load_dwordx2 s[20:21], s[0:1], 64')
    if args.stamp:
        a.i('s_memrealtime s[40:41]')
        a.i('s_getreg_b32 s46, hwreg(HW_REG_XCC_ID)')
        a.i('s_getreg_b32 s47, hwreg(HW_REG_HW_ID)')
    a.i('v_lshrrev_b32 %s, 6, v0' % vr(vX))
    a.i('v_and_b32 v0, 63, v0')
    a.i('v_readfirstlane_b32 %s, %s' % (sr(sWAVE), vr(vX)))
    a.i('v_lshlrev_b32 %s, 4, v0' % vr(vOFF))
    a.i('v_and_b32 %s, 0xf0, %s' % (vr(vX), vr(vOFF)))
    a.i('s_and_b32 %s, s2, 7' % sr(sROLE))
    a.i('s_lshr_b32 %s, s2, 3' % sr(sT0))
    a.i('s_lshl_b32 %s, %s, 2' % (sr(sT0), sr(sT0)))
    a.i('s_add_u32 %s, %s, %s' % (sr(sHEAD), sr(sT0), sr(sWAVE)))
    a.i('s_lshl_b32 %s, %s, 8' % (sr(sT2), sr(sHEAD)))
    a.i('v_add_u32 %s, %s, %s' % (vr(vX), sr(sT2), vr(vX)))
    a.i('s_lshl_b32 %s, %s, 21' % (sr(sT0), sr(sHEAD)))
    GR = args.gran
    assert GR == 2
    a.i('s_and_b32 %s, %s, 1' % (sr(sT1), sr(sROLE)))
    a.i('s_lshr_b32 %s, %s, 1' % (sr(sB0), sr(sROLE)))
    SEP = args.pos == 2
    if SEP:
        a.i('s_mul_i32 %s, %s, %d' % (sr(sNBR), sr(sT1), 4 * NSE))
        a.i('s_mul_i32 %s, %s, %d' % (sr(sA0), sr(sB0), GR))
        a.i('s_add_u32 %s, %s, %s' % (sr(sA0), sr(sA0), sr(sNBR)))
        a.i('s_lshl_b32 %s, %s, 12' % (sr(sA0), sr(sA0)))
    elif args.pos == 1:
        a.i('s_lshl_b32 %s, %s, 2' % (sr(sNBR), sr(sT1)))
        a.i('s_add_u32 %s, %s, %s' % (sr(sA0), sr(sB0), sr(sNBR)))
        a.i('s_mul_i32 %s, %s, %d' % (sr(sA0), sr(sA0), 4096 * GR))
    else:
        a.i('s_mul_i32 %s, %s, %d' % (sr(sA0), sr(sROLE), 4096 * GR))
    INCA = (R * GR - (GR - 1)) * 4096
    INCB = ((R // 2) * GR - (GR - 1)) * 4096
    if SEP:
        INCA = INCB
    PINCA = INCA + 4096
    PINCB = INCB + 4096
    a.i('s_mov_b32 %s, %s' % (sr(sOFF), sr(sA0)))
    for srd in (srdK, srdV, srdP):
        a.i('s_mov_b32 %s, %d' % (sr(srd + 2), 1 << 21))
        a.i('s_mov_b32 %s, 0x20000' % sr(srd + 3))
    a.i('s_waitcnt lgkmcnt(0)')
    a.i('global_load_dwordx4 %s, %s, %s' % (vr(vQ, 4), vr(vX), sr(sQ, 2)))
    def srd_base(srd, p):
        a.i('s_add_u32 %s, %s, %s' % (sr(srd), sr(p), sr(sT0)))
        a.i('s_addc_u32 %s, %s, 0' % (sr(srd + 1), sr(p + 1)))
        a.i('s_and_b32 %s, %s, 0xffff' % (sr(srd + 1), sr(srd + 1)))
    srd_base(srdK, sK)

    def S(k): return vBUF + 4 * k
    def ld(k, srd, sreg, piece, second=False):
        off = ' offset:%d' % (1024 * piece) if piece else ''
        a.i('buffer_load_dwordx4 %s, %s, %s, %s offen%s%s' % (vr(S(k), 4), vr(vOFF2 if second else vOFF), sr(srd, 4), sr(sreg), off, pol))
    GR = 2
    a.i('v_add_u32 %s, 4096, %s' % (vr(vOFF2), vr(vOFF)))
    vm.q = ['pre']
    for k in range(NF):
        ld(k, srdK, sA0, k % 4, k >= 4); vm.issue('S%d' % k)
    srd_base(srdV, sV)
    a.i('s_mov_b64 %s, %s' % (sr(srdP, 2), sr(srdK, 2)))
    a.i('s_mov_b32 %s, %s' % (sr(sCUR), sr(sA0)))
    a.i('s_add_u32 %s, %s, %d' % (sr(sNXT), sr(sA0), PINCA))
    if SEP:
        a.i('s_add_u32 %s, %s, %d' % (sr(sB0), sr(sA0), 4 * NSO * 4096))
    else:
        a.i('s_mul_i32 %s, %s, %d' % (sr(sB0), sr(sB0), GR))
        a.i('s_add_u32 %s, %s, %d' % (sr(sB0), sr(sB0), R * NSO))
        a.i('s_lshl_b32 %s, %s, 12' % (sr(sB0), sr(sB0)))
    a.i('s_cmp_eq_u32 %s, 0' % sr(sT1))
    a.i('s_cselect_b32 %s, %d, 0' % (sr(sNBR), NB))
    a.i('s_add_u32 %s, %s, 0x%x' % (sr(sT2), sr(sT2), WS_CNT))
    a.i('v_mov_b32 %s, %s' % (vr(vCNT), sr(sT2)))
    a.i('v_mov_b32 %s, 1' % vr(vONE))
    a.i('s_and_b32 %s, %s, 31' % (sr(sBIT), sr(sHEAD)))
    a.i('s_lshl_b32 %s, 1, %s' % (sr(sBIT), sr(sBIT)))
    a.i('s_lshr_b32 %s, %s, 5' % (sr(sT2), sr(sHEAD)))
    a.i('s_lshl_b32 %s, %s, 2' % (sr(sT2), sr(sT2)))
    a.i('v_mov_b32 %s, %s' % (vr(vFL), sr(sT2)))
    a.i('s_mov_b32 %s, 0' % sr(sNDYN))
    a.i('s_mul_i32 %s, %s, %d' % (sr(sT2), sr(sWAVE), LDSW))
    a.i('v_lshlrev_b32 %s, 2, v0' % vr(vLDS))
    a.i('v_add_u32 %s, %s, %s' % (vr(vLDS), sr(sT2), vr(vLDS)))
    a.i('v_mov_b32 %s, 0x%x' % (vr(vM), NEGBIG))
    a.i('v_mov_b32 %s, 0' % vr(vL))
    for j in range(8):
        a.i('v_mov_b32 %s, 0' % vr(vACC + j))
    a.i('s_cmp_eq_u32 %s, 0' % sr(sROLE))
    a.i('s_cbranch_scc0 L_notree')
    a.i('v_mov_b32 %s, 0' % vr(vS))
    a.i('v_mov_b32 %s, 0' % vr(vS + 1))
    a.i('s_mov_b64 exec, 1')
    a.i('global_atomic_swap_x2 %s, %s, %s, %s sc0' % (vr(vS + 2, 2), vr(vCNT), vr(vS, 2), sr(sWS, 2)))
    a.i('s_mov_b64 exec, -1')
    a.i('global_load_dwordx4 %s, %s, %s' % (vr(vT, 4), vr(vX), sr(sKT, 2)))
    a.i('global_load_dwordx4 %s, %s, %s' % (vr(vT + 4, 4), vr(vX), sr(sVT, 2)))
    a.i('s_lshr_b32 %s, %s, 5' % (sr(sT2), sr(sHEAD)))
    a.i('s_lshl_b32 %s, %s, 1' % (sr(sT2), sr(sT2)))
    a.i('v_mov_b32 %s, %s' % (vr(vMX), sr(sT2)))
    a.i('global_load_ushort %s, %s, %s' % (vr(vMX), vr(vMX), sr(sMASK, 2)))
    a.i('s_waitcnt vmcnt(0)')
    def publish():
        a.i('v_mov_b32 %s, %s' % (vr(vS + 1), sr(sBIT)))
        a.i('s_mov_b64 exec, 1')
        a.i('global_atomic_or %s, %s, %s' % (vr(vFL), vr(vS + 1), sr(sDBG, 2)))
        a.i('s_mov_b64 exec, -1')
    if not args.lateflag:
        publish()
    for j in range(4):
        a.i('v_dot2_f32_bf16 %s, %s, %s, %s' % (vr(vS), vr(vT + j), vr(vQ + j), '0' if j == 0 else vr(vS)))
    for r in (8, 4, 2, 1):
        a.i('v_add_f32_dpp %s, %s, %s row_ror:%d row_mask:0xf bank_mask:0xf' % (vr(vS), vr(vS), vr(vS), r))
    a.i('v_lshlrev_b32 %s, 16, %s' % (vr(vMX), vr(vMX)))
    a.i('v_sub_f32 %s, 1.0, %s' % (vr(vMX), vr(vMX)))
    a.i('v_mul_f32 %s, 0x%x, %s' % (vr(vMX), MASKC, vr(vMX)))
    a.i('v_mul_f32 %s, 0x%x, %s' % (vr(vS), CS, vr(vS)))
    a.i('s_mov_b64 exec, 0xffff')
    a.i('v_add_f32 %s, %s, %s' % (vr(vM), vr(vS), vr(vMX)))
    for j in range(4):
        a.i('v_lshlrev_b32 %s, 16, %s' % (vr(vACC + 2 * j), vr(vT + 4 + j)))
        a.i('v_and_b32 %s, 0xffff0000, %s' % (vr(vACC + 2 * j + 1), vr(vT + 4 + j)))
    a.i('s_mov_b64 exec, 0xf')
    a.i('v_mov_b32 %s, 1.0' % vr(vL))
    a.i('s_mov_b64 exec, -1')
    a.label('L_notree')
    a.i('v_mov_b32 %s, %s' % (vr(vM0), vr(vM)))
    vm.wait('pre')
    if args.stamp:
        a.i('s_memrealtime s[42:43]')

    BC = [0, 8, 4, 12]
    def dots(k, u):
        for jj in range(4):
            a.i('v_dot2_f32_bf16 %s, %s, %s, %s' % (vr(vS + u), vr(S(k) + jj), vr(vQ + jj), '0' if jj == 0 else vr(vS + u)))
    def reduce_scores():
        s0, s1, s2, s3 = [vr(vS + u) for u in range(4)]
        dp = lambda dst, src, ctl, bank: a.i('v_add_f32_dpp %s, %s, %s %s row_mask:0xf bank_mask:0x%x' % (dst, src, src, ctl, bank))
        dp(s0, s0, 'row_ror:8', 0x3); dp(s2, s2, 'row_ror:8', 0x3)
        dp(s0, s1, 'row_ror:8', 0xc); dp(s2, s3, 'row_ror:8', 0xc)
        dp(s0, s0, 'row_half_mirror', 0x5); dp(s0, s2, 'row_half_mirror', 0xa)
        dp(s0, s0, 'quad_perm:[1,0,3,2]', 0xf); dp(s0, s0, 'quad_perm:[2,3,0,1]', 0xf)
        a.i('v_mul_f32 %s, 0x%x, %s' % (s0, CS, s0))
    def online():
        s0 = vr(vS)
        a.i('v_max_f32_dpp %s, %s, %s row_ror:4 row_mask:0xf bank_mask:0xf' % (vr(vMX), s0, s0))
        a.i('v_max_f32_dpp %s, %s, %s row_ror:8 row_mask:0xf bank_mask:0xf' % (vr(vMX), vr(vMX), vr(vMX)))
        a.i('v_max_f32 %s, %s, %s' % (vr(vMX), vr(vM), vr(vMX)))
        a.i('v_sub_f32 %s, %s, %s' % (vr(vAL), vr(vM), vr(vMX)))
        a.i('v_sub_f32 %s, %s, %s' % (vr(vP), s0, vr(vMX)))
        a.i('v_exp_f32 %s, %s' % (vr(vAL), vr(vAL)))
        a.i('v_exp_f32 %s, %s' % (vr(vP), vr(vP)))
        a.i('v_mov_b32 %s, %s' % (vr(vM), vr(vMX)))
        for j in range(8):
            a.i('v_mul_f32 %s, %s, %s' % (vr(vACC + j), vr(vAL), vr(vACC + j)))
        a.i('v_fma_f32 %s, %s, %s, %s' % (vr(vL), vr(vL), vr(vAL), vr(vP)))
    def pv1(k, u, preg):
        v = S(k)
        for jj in range(4):
            a.i('v_lshlrev_b32 %s, 16, %s' % (vr(vT + 2 * jj), vr(v + jj)))
            a.i('v_and_b32 %s, 0xffff0000, %s' % (vr(vT + 2 * jj + 1), vr(v + jj)))
        for jj in range(8):
            a.i('v_fmac_f32_dpp %s, %s, %s row_newbcast:%d row_mask:0xf bank_mask:0xf' % (vr(vACC + jj), vr(preg), vr(vT + jj), BC[u]))
    def req_ticket():
        a.i('s_mov_b64 exec, 1')
        a.i('global_atomic_add %s, %s, %s, %s sc0' % (vr(vTK), vr(vCNT), vr(vONE), sr(sWS, 2)))
        a.i('s_mov_b64 exec, -1')
    def trace():
        if args.trace:
            a.i('s_memrealtime s[50:51]')
            a.i('s_waitcnt lgkmcnt(0)')
            a.i('s_mov_b32 m0, s%d' % sTI)
            a.i('s_nop 3')
            a.i('v_writelane_b32 %s, s50, m0' % vr(vTR))
            a.i('s_add_u32 s%d, s%d, 1' % (sTI, sTI))
    if args.trace:
        a.i('v_mov_b32 %s, 0' % vr(vTR))
        a.i('s_mov_b32 s%d, 0' % sTI)
    def refill_pair(i, q, srd_cur, srd_nxt):
        j = i + NF
        if j < 8:
            ld(j, srd_cur, sCUR, j % 4, j >= 4)
        elif srd_nxt is not None:
            j -= 8
            ld(j, srd_nxt, sNXT, j % 4, j >= 4)
        else:
            return
        q.issue('S%d' % j)
    def refill_tile(i, q, cur_is_pair, nxt):
        j = i + NF
        if j < 8:
            if cur_is_pair:
                ld(j, srdV, sCUR, j % 4, j >= 4)
            else:
                assert j >= 4
                ld(j, srdV, sCUR, j - 4)
        elif nxt:
            j -= 8
            if j < 4: ld(j, srdK, sNXT, j)
            else: ld(j, srdV, sNXT, j - 4)
        else:
            return
        q.issue('S%d' % j)
    def step_next():
        a.i('s_mov_b32 %s, %s' % (sr(sCUR), sr(sNXT)))
        a.i('s_add_u32 %s, %s, %s' % (sr(sNXT), sr(sNXT), sr(sINC)))

    a.i('s_mov_b32 %s, %d' % (sr(sINC), PINCA))
    a.i('s_mov_b32 %s, %d' % (sr(sCNT), NA - 1))
    a.i('s_cmp_eq_u32 %s, 0' % sr(sNBR))
    a.i('s_cselect_b32 %s, 1, 2' % sr(sSEG))
    q0 = list(vm.q)
    if args.align: a.raw('.p2align 6')
    a.label('L_kloop')
    for i in range(8):
        vm.wait('S%d' % i)
        refill_pair(i, vm, srdK, srdP)
        dots(i, i % 4)
        if i % 4 == 3:
            reduce_scores()
            a.i('v_max_f32 %s, %s, %s' % (vr(vM), vr(vM), vr(vS)))
            a.i('ds_write_b32 %s, %s offset:%d' % (vr(vLDS), vr(vS), 256 * (i // 4)))
    assert vm.q == q0, (vm.q, q0)
    a.i('v_add_u32 %s, 512, %s' % (vr(vLDS), vr(vLDS)))
    step_next()
    trace()
    a.i('s_sub_u32 %s, %s, 1' % (sr(sCNT), sr(sCNT)))
    a.i('s_cmp_lg_u32 %s, 0' % sr(sCNT))
    a.i('s_cbranch_scc1 L_kloop')
    a.i('s_cmp_eq_u32 %s, 2' % sr(sSEG))
    a.i('s_cbranch_scc0 L_kseg1')
    a.i('s_mov_b32 %s, %s' % (sr(sNXT), sr(sB0)))
    a.i('s_mov_b32 %s, %d' % (sr(sINC), PINCB))
    a.i('s_mov_b32 %s, %s' % (sr(sCNT), sr(sNBR)))
    a.i('s_mov_b32 %s, 1' % sr(sSEG))
    a.i('s_branch L_kloop')
    a.label('L_kseg1')
    a.i('s_cmp_eq_u32 %s, 1' % sr(sSEG))
    a.i('s_cbranch_scc0 L_kdone')
    a.i('s_mov_b64 %s, %s' % (sr(srdP, 2), sr(srdV, 2)))
    a.i('s_mov_b32 %s, %s' % (sr(sNXT), sr(sA0)))
    a.i('s_mov_b32 %s, %d' % (sr(sINC), PINCA))
    a.i('s_mov_b32 %s, 1' % sr(sCNT))
    a.i('s_mov_b32 %s, 0' % sr(sSEG))
    a.i('s_branch L_kloop')
    a.label('L_kdone')
    if args.stamp2:
        a.i('s_memrealtime s[42:43]')
        a.i('s_waitcnt lgkmcnt(0)')
    a.i('v_max_f32_dpp %s, %s, %s row_ror:4 row_mask:0xf bank_mask:0xf' % (vr(vM), vr(vM), vr(vM)))
    a.i('s_mul_i32 %s, %s, %d' % (sr(sT2), sr(sWAVE), LDSW))
    a.i('v_lshlrev_b32 %s, 2, v0' % vr(vLDS))
    a.i('v_max_f32_dpp %s, %s, %s row_ror:8 row_mask:0xf bank_mask:0xf' % (vr(vM), vr(vM), vr(vM)))
    a.i('v_add_u32 %s, %s, %s' % (vr(vLDS), sr(sT2), vr(vLDS)))
    a.i('v_sub_f32 %s, %s, %s' % (vr(vAL), vr(vM0), vr(vM)))
    a.i('v_exp_f32 %s, %s' % (vr(vAL), vr(vAL)))
    a.i('s_add_u32 %s, %s, %d' % (sr(sREM), sr(sNBR), NA - 1))
    a.i('s_mov_b32 %s, %d' % (sr(sCNT), NA - 1))
    a.i('v_mul_f32 %s, %s, %s' % (vr(vL), vr(vAL), vr(vL)))
    for j in range(8):
        a.i('v_mul_f32 %s, %s, %s' % (vr(vACC + j), vr(vAL), vr(vACC + j)))
    def vtop():
        a.i('ds_read2st64_b32 %s, %s offset0:0 offset1:1' % (vr(vP4, 2), vr(vLDS)))
    def vprob():
        a.i('s_waitcnt lgkmcnt(0)')
        for j in range(2):
            a.i('v_sub_f32 %s, %s, %s' % (vr(vP4 + j), vr(vP4 + j), vr(vM)))
        for j in range(2):
            a.i('v_exp_f32 %s, %s' % (vr(vP4 + j), vr(vP4 + j)))
        a.i('v_add_u32 %s, 512, %s' % (vr(vLDS), vr(vLDS)))
        a.i('v_add_f32 %s, %s, %s' % (vr(vMX), vr(vP4), vr(vP4 + 1)))
        a.i('v_add_f32 %s, %s, %s' % (vr(vL), vr(vL), vr(vMX)))
    if args.align: a.raw('.p2align 6')
    a.label('L_vloop')
    vtop()
    if args.lateflag:
        a.i('s_cmp_eq_u32 %s, 3' % sr(sREM))
        a.i('s_cbranch_scc0 L_nolate')
        a.i('s_cmp_eq_u32 %s, 0' % sr(sROLE))
        a.i('s_cbranch_scc0 L_nolate')
        publish()
        a.label('L_nolate')
    a.i('s_cmp_eq_u32 %s, 2' % sr(sREM))
    a.i('s_cbranch_scc0 L_noflagld')
    a.i('global_load_dword %s, %s, %s sc1' % (vr(vFV), vr(vFL), sr(sDBG, 2)))
    a.label('L_noflagld')
    vm.wait('S0')
    a.i('s_cmp_eq_u32 %s, 1' % sr(sREM))
    a.i('s_cbranch_scc0 L_noreq')
    a.i('v_readfirstlane_b32 %s, %s' % (sr(sT0), vr(vFV)))
    a.i('s_and_b32 %s, %s, %s' % (sr(sT0), sr(sT0), sr(sBIT)))
    a.i('s_cbranch_scc1 L_flag_ok')
    a.i('s_mov_b32 %s, 0x100000' % sr(sT1))
    a.label('L_spin')
    a.i('global_load_dword %s, %s, %s sc1' % (vr(vFV), vr(vFL), sr(sDBG, 2)))
    a.i('s_waitcnt vmcnt(0)')
    a.i('v_readfirstlane_b32 %s, %s' % (sr(sT0), vr(vFV)))
    a.i('s_and_b32 %s, %s, %s' % (sr(sT0), sr(sT0), sr(sBIT)))
    a.i('s_cbranch_scc1 L_flag_ok')
    a.i('s_sub_u32 %s, %s, 1' % (sr(sT1), sr(sT1)))
    a.i('s_cmp_lg_u32 %s, 0' % sr(sT1))
    a.i('s_cbranch_scc1 L_spin')
    a.label('L_flag_ok')
    req_ticket()
    a.label('L_noreq')
    for i in range(8):
        vm.wait('S%d' % i)
        refill_pair(i, vm, srdV, srdV)
        if i == 0:
            vprob()
        pv1(i, i % 4, vP4 + i // 4)
    assert vm.q == q0, (vm.q, q0)
    step_next()
    trace()
    a.i('s_sub_u32 %s, %s, 1' % (sr(sREM), sr(sREM)))
    a.i('s_sub_u32 %s, %s, 1' % (sr(sCNT), sr(sCNT)))
    a.i('s_cmp_lg_u32 %s, 0' % sr(sCNT))
    a.i('s_cbranch_scc1 L_vloop')
    a.i('s_cmp_eq_u32 %s, 0' % sr(sREM))
    a.i('s_cbranch_scc1 L_vlast')
    a.i('s_mov_b32 %s, %s' % (sr(sNXT), sr(sB0)))
    a.i('s_mov_b32 %s, %d' % (sr(sINC), PINCB))
    a.i('s_mov_b32 %s, %s' % (sr(sCNT), sr(sREM)))
    a.i('s_branch L_vloop')
    a.label('L_vlast')
    if args.stamp2:
        a.i('s_memrealtime s[66:67]')
        a.i('s_waitcnt lgkmcnt(0)')
    vtop()
    vm.wait('S0')
    a.i('v_readfirstlane_b32 %s, %s' % (sr(sTK), vr(vTK)))
    a.i('s_cmp_ge_u32 %s, %d' % (sr(sTK), NP))
    a.i('s_cbranch_scc1 L_vonly')
    qv = vm.copy()
    def ticket_to_nxt():
        a.i('s_lshl_b32 %s, %s, 13' % (sr(sNXT), sr(sTK)))
        a.i('s_add_u32 %s, %s, %d' % (sr(sNXT), sr(sNXT), ZS * 4096))
        if args.stamp:
            a.i('s_add_u32 %s, %s, 2' % (sr(sNDYN), sr(sNDYN)))
    ticket_to_nxt()
    for i in range(8):
        vm.wait('S%d' % i)
        refill_tile(i, vm, True, True)
        if i == 0:
            vprob()
        pv1(i, i % 4, vP4 + i // 4)
    a.i('s_mov_b32 %s, %s' % (sr(sCUR), sr(sNXT)))
    trace()
    def tile_body(q, nxt, first_waited):
        for i in range(8):
            q.wait('S%d' % i)
            refill_tile(i, q, False, nxt)
            if i < 4:
                dots(i, i)
                if i == 3:
                    reduce_scores()
                    online()
            else:
                pv1(i, i - 4, vP)
    q1 = list(vm.q)
    if args.align: a.raw('.p2align 6')
    a.label('L_dloop')
    a.i('s_add_u32 %s, %s, 4096' % (sr(sNXT), sr(sCUR)))
    vm.wait('S0')
    req_ticket(); vm.issue('T')
    tile_body(vm, True, True)
    a.i('s_mov_b32 %s, %s' % (sr(sCUR), sr(sNXT)))
    vm.wait('S0')
    vm.wait('T')
    a.i('v_readfirstlane_b32 %s, %s' % (sr(sTK), vr(vTK)))
    a.i('s_cmp_ge_u32 %s, %d' % (sr(sTK), NP))
    a.i('s_cbranch_scc1 L_drain')
    qd = vm.copy()
    ticket_to_nxt()
    tile_body(vm, True, True)
    a.i('s_mov_b32 %s, %s' % (sr(sCUR), sr(sNXT)))
    assert vm.q == q1, (vm.q, q1)
    trace()
    a.i('s_branch L_dloop')
    a.label('L_vonly')
    for i in range(8):
        qv.wait('S%d' % i)
        refill_tile(i, qv, True, False)
        if i == 0:
            vprob()
        pv1(i, i % 4, vP4 + i // 4)
    a.i('s_branch L_fin')
    a.label('L_drain')
    tile_body(qd, False, True)
    a.label('L_fin')
    if args.trace:
        trace()
        a.i('s_mul_i32 s48, s2, %d' % W)
        a.i('s_add_u32 s48, s48, %s' % sr(sWAVE))
        a.i('s_lshl_b32 s48, s48, 8')
        a.i('s_add_u32 s48, s48, 0x2000000')
        a.i('v_lshlrev_b32 v20, 2, v0')
        a.i('v_add_u32 v20, s48, v20')
        a.i('global_store_dword v20, %s, s[20:21]' % vr(vTR))
    if args.stamp:
        a.i('s_memrealtime s[44:45]')
        a.i('s_waitcnt lgkmcnt(0)')
        a.i('s_mul_i32 s48, s2, %d' % W)
        a.i('s_add_u32 s48, s48, %s' % sr(sWAVE))
        a.i('s_lshl_b32 s48, s48, 5')
        a.i('s_add_u32 s48, s48, 0x1000000')
        a.i('v_mov_b32 v20, s40')
        a.i('v_mov_b32 v21, s42')
        a.i('v_mov_b32 v22, s44')
        a.i('v_mov_b32 v23, s46')
        a.i('v_mov_b32 v24, s47')
        a.i('v_mov_b32 v25, s48')
        a.i('s_and_b32 s49, %s, 1' % sr(sROLE))
        a.i('s_cmp_eq_u32 s49, 0')
        a.i('s_cselect_b32 s49, %d, 0' % (NSE - NSO))
        a.i('s_add_u32 s49, s49, %s' % sr(sNDYN))
        a.i('v_mov_b32 v26, s49')
        a.i('v_mov_b32 v27, %s' % ('s66' if args.stamp2 else '0'))
        a.i('s_mov_b64 exec, 1')
        a.i('global_store_dwordx4 v25, v[20:23], s[20:21]')
        a.i('global_store_dword v25, v24, s[20:21] offset:16')
        a.i('global_store_dwordx2 v25, v[26:27], s[20:21] offset:24')
        a.i('s_mov_b64 exec, -1')
        a.i('s_nop 1')
    t0, t1 = vT, vT + 1
    a.i('v_add_f32_dpp %s, %s, %s row_ror:4 row_mask:0xf bank_mask:0xf' % (vr(vL), vr(vL), vr(vL)))
    a.i('v_mov_b32 %s, %s' % (vr(t0), vr(vM)))
    a.i('v_mov_b32 %s, %s' % (vr(t1), vr(vM)))
    a.i('v_add_f32_dpp %s, %s, %s row_ror:8 row_mask:0xf bank_mask:0xf' % (vr(vL), vr(vL), vr(vL)))
    a.i('v_permlane32_swap_b32 %s, %s' % (vr(t0), vr(t1)))
    a.i('v_max_f32 %s, %s, %s' % (vr(t0), vr(t0), vr(t1)))
    a.i('v_mov_b32 %s, %s' % (vr(t1), vr(t0)))
    a.i('v_permlane16_swap_b32 %s, %s' % (vr(t0), vr(t1)))
    a.i('v_max_f32 %s, %s, %s' % (vr(vMX), vr(t0), vr(t1)))
    a.i('v_sub_f32 %s, %s, %s' % (vr(vAL), vr(vM), vr(vMX)))
    a.i('v_exp_f32 %s, %s' % (vr(vAL), vr(vAL)))
    a.i('s_lshl_b32 %s, %s, 13' % (sr(sT0), sr(sHEAD)))
    a.i('v_add_u32 %s, %s, %s' % (vr(vOFF), sr(sT0), vr(vOFF)))
    a.i('s_lshl_b32 %s, %s, 10' % (sr(sT1), sr(sROLE)))
    a.i('v_add_u32 %s, %s, %s' % (vr(vX), sr(sT1), vr(vOFF)))
    a.i('v_mul_f32 %s, %s, %s' % (vr(vL), vr(vAL), vr(vL)))
    for j in range(8):
        a.i('v_mul_f32 %s, %s, %s' % (vr(vACC + j), vr(vAL), vr(vACC + j)))
    a.i('v_mov_b32 %s, %s' % (vr(t1), vr(vL)))
    a.i('v_permlane32_swap_b32 %s, %s' % (vr(vL), vr(t1)))
    for j in range(4):
        a.i('v_permlane32_swap_b32 %s, %s' % (vr(vACC + 2 * j), vr(vACC + 2 * j + 1)))
    a.i('v_add_f32 %s, %s, %s' % (vr(vL), vr(vL), vr(t1)))
    for j in range(4):
        a.i('v_add_f32 %s, %s, %s' % (vr(vACC + 2 * j), vr(vACC + 2 * j), vr(vACC + 2 * j + 1)))
    a.i('v_mov_b32 %s, %s' % (vr(t1), vr(vL)))
    a.i('v_permlane16_swap_b32 %s, %s' % (vr(vACC + 0), vr(vACC + 2)))
    a.i('v_permlane16_swap_b32 %s, %s' % (vr(vACC + 4), vr(vACC + 6)))
    a.i('v_permlane16_swap_b32 %s, %s' % (vr(vL), vr(t1)))
    a.i('v_add_f32 %s, %s, %s' % (vr(vACC + 0), vr(vACC + 0), vr(vACC + 2)))
    a.i('v_add_f32 %s, %s, %s' % (vr(vACC + 1), vr(vACC + 4), vr(vACC + 6)))
    a.i('v_add_f32 %s, %s, %s' % (vr(vACC + 3), vr(vL), vr(t1)))
    a.i('v_mov_b32 %s, %s' % (vr(vACC + 2), vr(vMX)))
    a.i('global_store_dwordx4 %s, %s, %s sc1' % (vr(vX), vr(vACC, 4), sr(sWS, 2)))
    a.i('s_waitcnt vmcnt(0)')
    a.i('s_mov_b64 exec, 1')
    a.i('global_atomic_add %s, %s, %s, %s offset:4 sc0' % (vr(vAL), vr(vCNT), vr(vONE), sr(sWS, 2)))
    a.i('s_waitcnt vmcnt(0)')
    a.i('v_readfirstlane_b32 %s, %s' % (sr(sT2), vr(vAL)))
    a.i('s_mov_b64 exec, -1')
    a.i('s_cmp_eq_u32 %s, %d' % (sr(sT2), R - 1))
    a.i('s_cbranch_scc0 L_end2')
    P = vBUF
    for s in range(R):
        if s == 4:
            a.i('v_add_u32 %s, 4096, %s' % (vr(vOFF), vr(vOFF)))
        a.i('global_load_dwordx4 %s, %s, %s offset:%d sc1' % (vr(P + 4 * s, 4), vr(vOFF), sr(sWS, 2), 1024 * (s % 4)))
    a.i('v_and_b32 %s, 15, v0' % vr(vX))
    a.i('v_lshlrev_b32 %s, 4, %s' % (vr(vX), vr(vX)))
    a.i('v_lshrrev_b32 %s, 4, v0' % vr(vP))
    a.i('v_lshl_add_u32 %s, %s, 2, %s' % (vr(vX), vr(vP), vr(vX)))
    a.i('s_lshl_b32 %s, %s, 8' % (sr(sT0), sr(sHEAD)))
    a.i('v_add_u32 %s, %s, %s' % (vr(vX), sr(sT0), vr(vX)))
    a.i('s_waitcnt vmcnt(0)')
    mx, L, o0, o1 = vMX, vL, vACC, vACC + 1
    a.i('v_max3_f32 %s, %s, %s, %s' % (vr(mx), vr(P + 2), vr(P + 6), vr(P + 10)))
    a.i('v_max3_f32 %s, %s, %s, %s' % (vr(vAL), vr(P + 14), vr(P + 18), vr(P + 22)))
    a.i('v_max3_f32 %s, %s, %s, %s' % (vr(mx), vr(mx), vr(P + 26), vr(P + 30)))
    a.i('v_max_f32 %s, %s, %s' % (vr(mx), vr(mx), vr(vAL)))
    for s in range(R):
        a.i('v_sub_f32 %s, %s, %s' % (vr(P + 4 * s + 2), vr(P + 4 * s + 2), vr(mx)))
    for s in range(R):
        a.i('v_exp_f32 %s, %s' % (vr(P + 4 * s + 2), vr(P + 4 * s + 2)))
    for s in range(R):
        fs = vr(P + 4 * s + 2)
        if s == 0:
            a.i('v_mul_f32 %s, %s, %s' % (vr(L), fs, vr(P + 3)))
            a.i('v_mul_f32 %s, %s, %s' % (vr(o0), fs, vr(P + 0)))
            a.i('v_mul_f32 %s, %s, %s' % (vr(o1), fs, vr(P + 1)))
        else:
            a.i('v_fmac_f32 %s, %s, %s' % (vr(L), fs, vr(P + 4 * s + 3)))
            a.i('v_fmac_f32 %s, %s, %s' % (vr(o0), fs, vr(P + 4 * s + 0)))
            a.i('v_fmac_f32 %s, %s, %s' % (vr(o1), fs, vr(P + 4 * s + 1)))
    a.i('v_rcp_f32 %s, %s' % (vr(L), vr(L)))
    a.i('v_mul_f32 %s, %s, %s' % (vr(o0), vr(o0), vr(L)))
    a.i('v_mul_f32 %s, %s, %s' % (vr(o1), vr(o1), vr(L)))
    a.i('v_permlane32_swap_b32 %s, %s' % (vr(o0), vr(o1)))
    a.i('v_cvt_pk_bf16_f32 %s, %s, %s' % (vr(t0), vr(o0), vr(o1)))
    a.i('global_store_dword %s, %s, %s%s' % (vr(vX), vr(t0), sr(sOUT, 2), (' ' + args.outpol.replace('+', ' ')) if args.outpol else ''))
    a.label('L_end2')
    if args.stamp:
        a.i('s_waitcnt vmcnt(0)')
        a.i('s_memrealtime s[44:45]')
        a.i('s_waitcnt lgkmcnt(0)')
        a.i('v_mov_b32 v20, s44')
        a.i('v_mov_b32 v25, s48')
        a.i('s_mov_b64 exec, 1')
        a.i('global_store_dword v25, v20, s[20:21] offset:20')
    a.label('L_end')
    a.i('s_endpgm')
    a.raw('.section .rodata,"a"')
    a.raw('.p2align 6')
    a.raw('.amdhsa_kernel %s' % main)
    a.raw('  .amdhsa_next_free_vgpr %d' % nvgpr)
    a.raw('  .amdhsa_next_free_sgpr 72')
    a.raw('  .amdhsa_accum_offset %d' % ((nvgpr + 3) // 4 * 4))
    a.raw('  .amdhsa_group_segment_fixed_size 0')
    a.raw('  .amdhsa_kernarg_size 72')
    a.raw('  .amdhsa_user_sgpr_count 2')
    a.raw('  .amdhsa_user_sgpr_kernarg_segment_ptr 1')
    a.raw('  .amdhsa_system_sgpr_workgroup_id_x 1')
    a.raw('  .amdhsa_float_denorm_mode_32 3')
    a.raw('.end_amdhsa_kernel')
    return a.text()

if __name__ == '__main__':
    ap = argparse.ArgumentParser()
    ap.add_argument('-o', required=True)
    ap.add_argument('--nse', type=int, default=64)
    ap.add_argument('--nso', type=int, default=52)
    ap.add_argument('--pol', default='nt')
    ap.add_argument('--early', action='store_true')
    ap.add_argument('--inflight', type=int, default=6)
    ap.add_argument('--singles', type=int, default=0)
    ap.add_argument('--outpol', default='')
    ap.add_argument('--gran', type=int, default=2)
    ap.add_argument('--pos', type=int, default=0)
    ap.add_argument('--align', action='store_true')
    ap.add_argument('--stamp', action='store_true')
    ap.add_argument('--lateflag', action='store_true')
    ap.add_argument('--stamp2', action='store_true')
    ap.add_argument('--trace', action='store_true')
    args = ap.parse_args()
    write(args, gen(args))
```

```python
import argparse, os, sys
from asmlib import Asm
from gen import HDR, KN, fbits, CS, NEGBIG, MASKC, vr, sr
from gen2 import VMQ, write

NH = 128
NTILE = 512
R = 8

def gen(args):
    D, NSE, NSO = args.depth, args.nse, args.nso
    W = 4
    ZS = R * NSO + (R // 2) * (NSE - NSO)
    ND = NTILE - ZS
    assert ND % D == 0 and NSE >= NSO and (NSE - NSO) % D == 0 and NSO % D == 0
    NP = ND // D
    pol = (' ' + args.pol.replace('+', ' ')) if args.pol else ''
    full = not args.noc
    NWG = NH * R // W
    vOFF, vM, vL = 1, 2, 3
    vQ, vS, vACC, vT = 4, 8, 12, 20
    vMX, vAL, vP, vX = 28, 29, 30, 31
    vTK, vONE, vCNT, vFL, vFV, vTR = 32, 33, 34, 35, 36, 37
    vBUF = 40
    nvgpr = max(vBUF + 32 * D, vBUF + 32)
    sQ, sK, sV, sKT, sVT, sMASK, sOUT, sDBG, sWS = 4, 6, 8, 10, 12, 14, 16, 18, 20
    sHEAD, sROLE, sWAVE = 22, 23, 3
    srdK, srdV = 24, 28
    sOFF, sCNT, sT0, sT1, sT2, sTK, sBIT, sNDYN = 32, 33, 34, 35, 36, 37, 38, 39
    sINC, sPH, sTI = 52, 53, 55
    WS_CNT = 0x100000
    a = Asm()
    vm = VMQ(a)
    main = KN + '_kernel'
    a.raw(HDR.rstrip('\n'))
    a.raw('; generated: gen3 ' + ' '.join(sys.argv[1:]))
    a.raw('; @launch grid=(%d,1,1) block=(%d,1,1) lds=0' % (NWG, 64 * W))
    a.raw('.amdgcn_target "amdgcn-amd-amdhsa--gfx950"')
    a.raw('.text')
    a.raw('.globl %s' % main)
    a.raw('.p2align 8')
    a.raw('.type %s,@function' % main)
    a.raw(main + ':')
    a.i('s_cmp_ge_u32 s2, %d' % NWG)
    a.i('s_cbranch_scc1 L_end')
    a.i('s_load_dwordx16 s[4:19], s[0:1], 0')
    a.i('s_load_dwordx2 s[20:21], s[0:1], 64')
    if args.stamp:
        a.i('s_memrealtime s[40:41]')
        a.i('s_getreg_b32 s46, hwreg(HW_REG_XCC_ID)')
        a.i('s_getreg_b32 s47, hwreg(HW_REG_HW_ID)')
    a.i('v_lshrrev_b32 %s, 6, v0' % vr(vX))
    a.i('v_and_b32 v0, 63, v0')
    a.i('v_readfirstlane_b32 %s, %s' % (sr(sWAVE), vr(vX)))
    a.i('v_lshlrev_b32 %s, 4, v0' % vr(vOFF))
    a.i('v_and_b32 %s, 0xf0, %s' % (vr(vX), vr(vOFF)))
    a.i('s_and_b32 %s, s2, 7' % sr(sROLE))
    a.i('s_lshr_b32 %s, s2, 3' % sr(sT0))
    a.i('s_lshl_b32 %s, %s, 2' % (sr(sT0), sr(sT0)))
    a.i('s_add_u32 %s, %s, %s' % (sr(sHEAD), sr(sT0), sr(sWAVE)))
    a.i('s_lshl_b32 %s, %s, 8' % (sr(sT2), sr(sHEAD)))
    a.i('v_add_u32 %s, %s, %s' % (vr(vX), sr(sT2), vr(vX)))
    a.i('s_lshl_b32 %s, %s, 21' % (sr(sT0), sr(sHEAD)))
    if args.pos == 1:
        a.i('s_and_b32 %s, %s, 1' % (sr(sT1), sr(sROLE)))
        a.i('s_lshl_b32 %s, %s, 2' % (sr(sT1), sr(sT1)))
        a.i('s_lshr_b32 %s, %s, 1' % (sr(sOFF), sr(sROLE)))
        a.i('s_add_u32 %s, %s, %s' % (sr(sOFF), sr(sOFF), sr(sT1)))
        a.i('s_lshl_b32 %s, %s, 12' % (sr(sOFF), sr(sOFF)))
    else:
        a.i('s_lshl_b32 %s, %s, 12' % (sr(sOFF), sr(sROLE)))
    a.i('s_waitcnt lgkmcnt(0)')
    a.i('global_load_dwordx4 %s, %s, %s' % (vr(vQ, 4), vr(vX), sr(sQ, 2)))
    for (srd, p) in ((srdK, sK), (srdV, sV)):
        a.i('s_add_u32 %s, %s, %s' % (sr(srd), sr(p), sr(sT0)))
        a.i('s_addc_u32 %s, %s, 0' % (sr(srd + 1), sr(p + 1)))
        a.i('s_and_b32 %s, %s, 0xffff' % (sr(srd + 1), sr(srd + 1)))
        a.i('s_mov_b32 %s, %d' % (sr(srd + 2), 1 << 21))
        a.i('s_mov_b32 %s, 0x20000' % sr(srd + 3))

    def K(d): return vBUF + 32 * d
    def V(d): return vBUF + 32 * d + 16
    def loads(base, srd, tag, q):
        for u in range(4):
            off = ' offset:%d' % (1024 * u) if u else ''
            a.i('buffer_load_dwordx4 %s, %s, %s, %s offen%s%s' % (vr(base + 4 * u, 4), vr(vOFF), sr(srd, 4), sr(sOFF), off, pol))
            q.issue(tag)
    vm.q = ['pre']
    for d in range(D):
        loads(K(d), srdK, 'K%d' % d, vm)
        loads(V(d), srdV, 'V%d' % d, vm)
        a.i('s_add_u32 %s, %s, %d' % (sr(sOFF), sr(sOFF), R * 4096))
    a.i('s_add_u32 %s, %s, 0x%x' % (sr(sT2), sr(sT2), WS_CNT))
    a.i('v_mov_b32 %s, %s' % (vr(vCNT), sr(sT2)))
    a.i('v_mov_b32 %s, 1' % vr(vONE))
    a.i('s_and_b32 %s, %s, 31' % (sr(sBIT), sr(sHEAD)))
    a.i('s_lshl_b32 %s, 1, %s' % (sr(sBIT), sr(sBIT)))
    a.i('s_lshr_b32 %s, %s, 5' % (sr(sT2), sr(sHEAD)))
    a.i('s_lshl_b32 %s, %s, 2' % (sr(sT2), sr(sT2)))
    a.i('v_mov_b32 %s, %s' % (vr(vFL), sr(sT2)))
    a.i('s_mov_b32 %s, 0' % sr(sNDYN))
    a.i('v_mov_b32 %s, 0x%x' % (vr(vM), NEGBIG))
    a.i('v_mov_b32 %s, 0' % vr(vL))
    for j in range(8):
        a.i('v_mov_b32 %s, 0' % vr(vACC + j))
    a.i('s_cmp_eq_u32 %s, 0' % sr(sROLE))
    a.i('s_cbranch_scc0 L_notree')
    a.i('v_mov_b32 %s, 0' % vr(vS))
    a.i('v_mov_b32 %s, 0' % vr(vS + 1))
    a.i('s_mov_b64 exec, 1')
    a.i('global_atomic_swap_x2 %s, %s, %s, %s sc0' % (vr(vS + 2, 2), vr(vCNT), vr(vS, 2), sr(sWS, 2)))
    a.i('s_mov_b64 exec, -1')
    a.i('global_load_dwordx4 %s, %s, %s' % (vr(vT, 4), vr(vX), sr(sKT, 2)))
    a.i('global_load_dwordx4 %s, %s, %s' % (vr(vT + 4, 4), vr(vX), sr(sVT, 2)))
    a.i('s_lshr_b32 %s, %s, 5' % (sr(sT2), sr(sHEAD)))
    a.i('s_lshl_b32 %s, %s, 1' % (sr(sT2), sr(sT2)))
    a.i('v_mov_b32 %s, %s' % (vr(vMX), sr(sT2)))
    a.i('global_load_ushort %s, %s, %s' % (vr(vMX), vr(vMX), sr(sMASK, 2)))
    a.i('s_waitcnt vmcnt(0)')
    a.i('v_mov_b32 %s, %s' % (vr(vS + 1), sr(sBIT)))
    a.i('s_mov_b64 exec, 1')
    a.i('global_atomic_or %s, %s, %s' % (vr(vFL), vr(vS + 1), sr(sDBG, 2)))
    a.i('s_mov_b64 exec, -1')
    for j in range(4):
        a.i('v_dot2_f32_bf16 %s, %s, %s, %s' % (vr(vS), vr(vT + j), vr(vQ + j), '0' if j == 0 else vr(vS)))
    for r in (8, 4, 2, 1):
        a.i('v_add_f32_dpp %s, %s, %s row_ror:%d row_mask:0xf bank_mask:0xf' % (vr(vS), vr(vS), vr(vS), r))
    a.i('v_lshlrev_b32 %s, 16, %s' % (vr(vMX), vr(vMX)))
    a.i('v_sub_f32 %s, 1.0, %s' % (vr(vMX), vr(vMX)))
    a.i('v_mul_f32 %s, 0x%x, %s' % (vr(vMX), MASKC, vr(vMX)))
    a.i('v_mul_f32 %s, 0x%x, %s' % (vr(vS), CS, vr(vS)))
    a.i('s_mov_b64 exec, 0xffff')
    a.i('v_add_f32 %s, %s, %s' % (vr(vM), vr(vS), vr(vMX)))
    for j in range(4):
        a.i('v_lshlrev_b32 %s, 16, %s' % (vr(vACC + 2 * j), vr(vT + 4 + j)))
        a.i('v_and_b32 %s, 0xffff0000, %s' % (vr(vACC + 2 * j + 1), vr(vT + 4 + j)))
    a.i('s_mov_b64 exec, 0xf')
    a.i('v_mov_b32 %s, 1.0' % vr(vL))
    a.i('s_mov_b64 exec, -1')
    a.label('L_notree')
    vm.wait('pre')
    if args.stamp:
        a.i('s_memrealtime s[42:43]')

    BC = [0, 8, 4, 12]
    def qk(d, q):
        k = K(d)
        q.wait('K%d' % d)
        if full:
            for j in range(4):
                for u in range(4):
                    a.i('v_dot2_f32_bf16 %s, %s, %s, %s' % (vr(vS + u), vr(k + 4 * u + j), vr(vQ + j), '0' if j == 0 else vr(vS + u)))
    def softmax():
        if not full: return
        s0, s1, s2, s3 = [vr(vS + u) for u in range(4)]
        dp = lambda dst, src, ctl, bank: a.i('v_add_f32_dpp %s, %s, %s %s row_mask:0xf bank_mask:0x%x' % (dst, src, src, ctl, bank))
        dp(s0, s0, 'row_ror:8', 0x3); dp(s2, s2, 'row_ror:8', 0x3)
        dp(s0, s1, 'row_ror:8', 0xc); dp(s2, s3, 'row_ror:8', 0xc)
        dp(s0, s0, 'row_half_mirror', 0x5); dp(s0, s2, 'row_half_mirror', 0xa)
        dp(s0, s0, 'quad_perm:[1,0,3,2]', 0xf); dp(s0, s0, 'quad_perm:[2,3,0,1]', 0xf)
        a.i('v_mul_f32 %s, 0x%x, %s' % (s0, CS, s0))
        a.i('v_max_f32_dpp %s, %s, %s row_ror:4 row_mask:0xf bank_mask:0xf' % (vr(vMX), s0, s0))
        a.i('v_max_f32_dpp %s, %s, %s row_ror:8 row_mask:0xf bank_mask:0xf' % (vr(vMX), vr(vMX), vr(vMX)))
        a.i('v_max_f32 %s, %s, %s' % (vr(vMX), vr(vM), vr(vMX)))
        a.i('v_sub_f32 %s, %s, %s' % (vr(vAL), vr(vM), vr(vMX)))
        a.i('v_sub_f32 %s, %s, %s' % (vr(vP), s0, vr(vMX)))
        a.i('v_exp_f32 %s, %s' % (vr(vAL), vr(vAL)))
        a.i('v_exp_f32 %s, %s' % (vr(vP), vr(vP)))
        a.i('v_mov_b32 %s, %s' % (vr(vM), vr(vMX)))
        for j in range(8):
            a.i('v_mul_f32 %s, %s, %s' % (vr(vACC + j), vr(vAL), vr(vACC + j)))
        a.i('v_fma_f32 %s, %s, %s, %s' % (vr(vL), vr(vL), vr(vAL), vr(vP)))
    def pv(d, q):
        v = V(d)
        q.wait('V%d' % d)
        if full:
            for u in range(4):
                for j in range(4):
                    a.i('v_lshlrev_b32 %s, 16, %s' % (vr(vT + 2 * j), vr(v + 4 * u + j)))
                    a.i('v_and_b32 %s, 0xffff0000, %s' % (vr(vT + 2 * j + 1), vr(v + 4 * u + j)))
                for j in range(8):
                    a.i('v_fmac_f32_dpp %s, %s, %s row_newbcast:%d row_mask:0xf bank_mask:0xf' % (vr(vACC + j), vr(vP), vr(vT + j), BC[u]))
    def req_ticket(q):
        a.i('s_mov_b64 exec, 1')
        a.i('global_atomic_add %s, %s, %s, %s sc0' % (vr(vTK), vr(vCNT), vr(vONE), sr(sWS, 2)))
        a.i('s_mov_b64 exec, -1')
        q.issue('T')
    def body(d, q, inc):
        qk(d, q)
        if inc is not None:
            loads(K(d), srdK, 'K%d' % d, q)
        softmax()
        pv(d, q)
        if inc is not None:
            loads(V(d), srdV, 'V%d' % d, q)
            if inc:
                a.i('s_add_u32 %s, %s, %s' % (sr(sOFF), sr(sOFF), inc))
    def trace():
        if args.trace:
            a.i('s_memrealtime s[50:51]')
            a.i('s_waitcnt lgkmcnt(0)')
            a.i('s_mov_b32 m0, s%d' % sTI)
            a.i('s_nop 3')
            a.i('v_writelane_b32 %s, s50, m0' % vr(vTR))
            a.i('s_add_u32 s%d, s%d, 1' % (sTI, sTI))
    if args.trace:
        a.i('v_mov_b32 %s, 0' % vr(vTR))
        a.i('s_mov_b32 s%d, 0' % sTI)

    nB = (NSE - NSO) // D
    nA_even = NSO // D - 1
    nA_odd = NSO // D - 2
    a.i('s_mov_b32 %s, %d' % (sr(sINC), R * 4096))
    a.i('s_and_b32 %s, %s, 1' % (sr(sT0), sr(sROLE)))
    if nB > 0:
        a.i('s_cmp_eq_u32 %s, 0' % sr(sT0))
        a.i('s_cselect_b32 %s, %d, %d' % (sr(sCNT), nA_even, nA_odd))
        a.i('s_cselect_b32 %s, %d, 0' % (sr(sPH), nB))
    else:
        a.i('s_mov_b32 %s, %d' % (sr(sCNT), nA_odd))
        a.i('s_mov_b32 %s, 0' % sr(sPH))
    q0 = list(vm.q)
    if args.align: a.raw('.p2align 6')
    a.label('L_sloop')
    a.i('s_cmp_eq_u32 %s, 1' % sr(sCNT))
    a.i('s_cbranch_scc0 L_noflagld')
    a.i('global_load_dword %s, %s, %s sc1' % (vr(vFV), vr(vFL), sr(sDBG, 2)))
    a.label('L_noflagld')
    if args.pretouch:
        a.i('s_cmp_eq_u32 %s, %d' % (sr(sCNT), args.pretouch))
        a.i('s_cbranch_scc0 L_notouch')
        a.i('s_mov_b32 %s, 0x100000' % sr(sT0))
        a.i('s_mov_b64 exec, 1')
        a.i('buffer_load_dword %s, %s, %s, %s offen%s' % (vr(vFV + 2), vr(vOFF), sr(srdK, 4), sr(sT0), pol))
        a.i('buffer_load_dword %s, %s, %s, %s offen%s' % (vr(vFV + 3), vr(vOFF), sr(srdV, 4), sr(sT0), pol))
        a.i('s_mov_b64 exec, -1')
        a.label('L_notouch')
    for d in range(D):
        body(d, vm, sr(sINC))
    assert vm.q == q0, (vm.q, q0)
    trace()
    a.i('s_sub_u32 %s, %s, 1' % (sr(sCNT), sr(sCNT)))
    a.i('s_cmp_lg_u32 %s, 0' % sr(sCNT))
    a.i('s_cbranch_scc1 L_sloop')
    if nB > 0:
        a.i('s_cmp_eq_u32 %s, 0' % sr(sPH))
        a.i('s_cbranch_scc1 L_static_done')
        a.i('s_lshr_b32 %s, %s, 1' % (sr(sOFF), sr(sROLE)))
        a.i('s_add_u32 %s, %s, %d' % (sr(sOFF), sr(sOFF), R * NSO))
        a.i('s_lshl_b32 %s, %s, 12' % (sr(sOFF), sr(sOFF)))
        a.i('s_mov_b32 %s, %d' % (sr(sINC), (R // 2) * 4096))
        a.i('s_sub_u32 %s, %s, 1' % (sr(sCNT), sr(sPH)))
        a.i('s_mov_b32 %s, 0' % sr(sPH))
        if nB > 1:
            a.i('s_branch L_sloop')
        else:
            a.i('global_load_dword %s, %s, %s sc1' % (vr(vFV), vr(vFL), sr(sDBG, 2)))
            a.i('s_waitcnt vmcnt(0)')
    a.label('L_static_done')
    vm.wait('K0')
    a.i('v_readfirstlane_b32 %s, %s' % (sr(sT0), vr(vFV)))
    a.i('s_and_b32 %s, %s, %s' % (sr(sT0), sr(sT0), sr(sBIT)))
    a.i('s_cbranch_scc1 L_flag_ok')
    a.i('s_mov_b32 %s, 0x100000' % sr(sCNT))
    a.label('L_spin')
    a.i('s_sleep 4')
    a.i('global_load_dword %s, %s, %s sc1' % (vr(vFV), vr(vFL), sr(sDBG, 2)))
    a.i('s_waitcnt vmcnt(0)')
    a.i('v_readfirstlane_b32 %s, %s' % (sr(sT0), vr(vFV)))
    a.i('s_and_b32 %s, %s, %s' % (sr(sT0), sr(sT0), sr(sBIT)))
    a.i('s_cbranch_scc1 L_flag_ok')
    a.i('s_sub_u32 %s, %s, 1' % (sr(sCNT), sr(sCNT)))
    a.i('s_cmp_lg_u32 %s, 0' % sr(sCNT))
    a.i('s_cbranch_scc1 L_spin')
    a.label('L_flag_ok')
    req_ticket(vm)
    for d in range(D):
        body(d, vm, sr(sINC))
    trace()
    q1 = list(vm.q)
    if args.align: a.raw('.p2align 6')
    a.label('L_dloop')
    vm.wait('K0')
    vm.wait('T')
    a.i('v_readfirstlane_b32 %s, %s' % (sr(sTK), vr(vTK)))
    a.i('s_cmp_ge_u32 %s, %d' % (sr(sTK), NP))
    a.i('s_cbranch_scc1 L_drain')
    qd = vm.copy()
    req_ticket(vm)
    a.i('s_mul_i32 %s, %s, %d' % (sr(sOFF), sr(sTK), D * 4096))
    a.i('s_add_u32 %s, %s, %d' % (sr(sOFF), sr(sOFF), ZS * 4096))
    if args.stamp:
        a.i('s_add_u32 %s, %s, %d' % (sr(sNDYN), sr(sNDYN), D))
    for d in range(D):
        body(d, vm, '4096' if d < D - 1 else '')
    assert vm.q == q1, (vm.q, q1)
    trace()
    a.i('s_branch L_dloop')
    a.label('L_drain')
    for d in range(D):
        body(d, qd, None)
    a.label('L_fin')
    if args.trace:
        trace()
        a.i('s_mul_i32 s48, s2, %d' % W)
        a.i('s_add_u32 s48, s48, %s' % sr(sWAVE))
        a.i('s_lshl_b32 s48, s48, 8')
        a.i('s_add_u32 s48, s48, 0x2000000')
        a.i('v_lshlrev_b32 v20, 2, v0')
        a.i('v_add_u32 v20, s48, v20')
        a.i('global_store_dword v20, %s, s[20:21]' % vr(vTR))
    if args.stamp:
        a.i('s_memrealtime s[44:45]')
        a.i('s_waitcnt lgkmcnt(0)')
        a.i('s_mul_i32 s48, s2, %d' % W)
        a.i('s_add_u32 s48, s48, %s' % sr(sWAVE))
        a.i('s_lshl_b32 s48, s48, 5')
        a.i('s_add_u32 s48, s48, 0x1000000')
        a.i('v_mov_b32 v20, s40')
        a.i('v_mov_b32 v21, s42')
        a.i('v_mov_b32 v22, s44')
        a.i('v_mov_b32 v23, s46')
        a.i('v_mov_b32 v24, s47')
        a.i('v_mov_b32 v25, s48')
        a.i('s_and_b32 s49, %s, 1' % sr(sROLE))
        a.i('s_cmp_eq_u32 s49, 0')
        a.i('s_cselect_b32 s49, %d, 0' % (NSE - NSO))
        a.i('s_add_u32 s49, s49, %s' % sr(sNDYN))
        a.i('v_mov_b32 v26, s49')
        a.i('v_mov_b32 v27, 0')
        a.i('s_mov_b64 exec, 1')
        a.i('global_store_dwordx4 v25, v[20:23], s[20:21]')
        a.i('global_store_dword v25, v24, s[20:21] offset:16')
        a.i('global_store_dwordx2 v25, v[26:27], s[20:21] offset:24')
        a.i('s_mov_b64 exec, -1')
        a.i('s_nop 1')
    t0, t1 = vT, vT + 1
    a.i('v_add_f32_dpp %s, %s, %s row_ror:4 row_mask:0xf bank_mask:0xf' % (vr(vL), vr(vL), vr(vL)))
    a.i('v_mov_b32 %s, %s' % (vr(t0), vr(vM)))
    a.i('v_mov_b32 %s, %s' % (vr(t1), vr(vM)))
    a.i('v_add_f32_dpp %s, %s, %s row_ror:8 row_mask:0xf bank_mask:0xf' % (vr(vL), vr(vL), vr(vL)))
    a.i('v_permlane32_swap_b32 %s, %s' % (vr(t0), vr(t1)))
    a.i('v_max_f32 %s, %s, %s' % (vr(t0), vr(t0), vr(t1)))
    a.i('v_mov_b32 %s, %s' % (vr(t1), vr(t0)))
    a.i('v_permlane16_swap_b32 %s, %s' % (vr(t0), vr(t1)))
    a.i('v_max_f32 %s, %s, %s' % (vr(vMX), vr(t0), vr(t1)))
    a.i('v_sub_f32 %s, %s, %s' % (vr(vAL), vr(vM), vr(vMX)))
    a.i('v_exp_f32 %s, %s' % (vr(vAL), vr(vAL)))
    a.i('s_lshl_b32 %s, %s, 13' % (sr(sT0), sr(sHEAD)))
    a.i('v_add_u32 %s, %s, %s' % (vr(vOFF), sr(sT0), vr(vOFF)))
    a.i('s_lshl_b32 %s, %s, 10' % (sr(sT1), sr(sROLE)))
    a.i('v_add_u32 %s, %s, %s' % (vr(vX), sr(sT1), vr(vOFF)))
    a.i('v_mul_f32 %s, %s, %s' % (vr(vL), vr(vAL), vr(vL)))
    for j in range(8):
        a.i('v_mul_f32 %s, %s, %s' % (vr(vACC + j), vr(vAL), vr(vACC + j)))
    a.i('v_mov_b32 %s, %s' % (vr(t1), vr(vL)))
    a.i('v_permlane32_swap_b32 %s, %s' % (vr(vL), vr(t1)))
    for j in range(4):
        a.i('v_permlane32_swap_b32 %s, %s' % (vr(vACC + 2 * j), vr(vACC + 2 * j + 1)))
    a.i('v_add_f32 %s, %s, %s' % (vr(vL), vr(vL), vr(t1)))
    for j in range(4):
        a.i('v_add_f32 %s, %s, %s' % (vr(vACC + 2 * j), vr(vACC + 2 * j), vr(vACC + 2 * j + 1)))
    a.i('v_mov_b32 %s, %s' % (vr(t1), vr(vL)))
    a.i('v_permlane16_swap_b32 %s, %s' % (vr(vACC + 0), vr(vACC + 2)))
    a.i('v_permlane16_swap_b32 %s, %s' % (vr(vACC + 4), vr(vACC + 6)))
    a.i('v_permlane16_swap_b32 %s, %s' % (vr(vL), vr(t1)))
    a.i('v_add_f32 %s, %s, %s' % (vr(vACC + 0), vr(vACC + 0), vr(vACC + 2)))
    a.i('v_add_f32 %s, %s, %s' % (vr(vACC + 1), vr(vACC + 4), vr(vACC + 6)))
    a.i('v_add_f32 %s, %s, %s' % (vr(vACC + 3), vr(vL), vr(t1)))
    a.i('v_mov_b32 %s, %s' % (vr(vACC + 2), vr(vMX)))
    a.i('global_store_dwordx4 %s, %s, %s sc1' % (vr(vX), vr(vACC, 4), sr(sWS, 2)))
    a.i('s_waitcnt vmcnt(0)')
    a.i('s_mov_b64 exec, 1')
    a.i('global_atomic_add %s, %s, %s, %s offset:4 sc0' % (vr(vAL), vr(vCNT), vr(vONE), sr(sWS, 2)))
    a.i('s_waitcnt vmcnt(0)')
    a.i('v_readfirstlane_b32 %s, %s' % (sr(sT2), vr(vAL)))
    a.i('s_mov_b64 exec, -1')
    a.i('s_cmp_eq_u32 %s, %d' % (sr(sT2), R - 1))
    a.i('s_cbranch_scc0 L_end2')
    P = vBUF
    for s in range(R):
        if s == 4:
            a.i('v_add_u32 %s, 4096, %s' % (vr(vOFF), vr(vOFF)))
        a.i('global_load_dwordx4 %s, %s, %s offset:%d sc1' % (vr(P + 4 * s, 4), vr(vOFF), sr(sWS, 2), 1024 * (s % 4)))
    a.i('v_and_b32 %s, 15, v0' % vr(vX))
    a.i('v_lshlrev_b32 %s, 4, %s' % (vr(vX), vr(vX)))
    a.i('v_lshrrev_b32 %s, 4, v0' % vr(vP))
    a.i('v_lshl_add_u32 %s, %s, 2, %s' % (vr(vX), vr(vP), vr(vX)))
    a.i('s_lshl_b32 %s, %s, 8' % (sr(sT0), sr(sHEAD)))
    a.i('v_add_u32 %s, %s, %s' % (vr(vX), sr(sT0), vr(vX)))
    a.i('s_waitcnt vmcnt(0)')
    mx, L, o0, o1 = vMX, vL, vACC, vACC + 1
    a.i('v_max3_f32 %s, %s, %s, %s' % (vr(mx), vr(P + 2), vr(P + 6), vr(P + 10)))
    a.i('v_max3_f32 %s, %s, %s, %s' % (vr(vAL), vr(P + 14), vr(P + 18), vr(P + 22)))
    a.i('v_max3_f32 %s, %s, %s, %s' % (vr(mx), vr(mx), vr(P + 26), vr(P + 30)))
    a.i('v_max_f32 %s, %s, %s' % (vr(mx), vr(mx), vr(vAL)))
    for s in range(R):
        a.i('v_sub_f32 %s, %s, %s' % (vr(P + 4 * s + 2), vr(P + 4 * s + 2), vr(mx)))
    for s in range(R):
        a.i('v_exp_f32 %s, %s' % (vr(P + 4 * s + 2), vr(P + 4 * s + 2)))
    for s in range(R):
        fs = vr(P + 4 * s + 2)
        if s == 0:
            a.i('v_mul_f32 %s, %s, %s' % (vr(L), fs, vr(P + 3)))
            a.i('v_mul_f32 %s, %s, %s' % (vr(o0), fs, vr(P + 0)))
            a.i('v_mul_f32 %s, %s, %s' % (vr(o1), fs, vr(P + 1)))
        else:
            a.i('v_fmac_f32 %s, %s, %s' % (vr(L), fs, vr(P + 4 * s + 3)))
            a.i('v_fmac_f32 %s, %s, %s' % (vr(o0), fs, vr(P + 4 * s + 0)))
            a.i('v_fmac_f32 %s, %s, %s' % (vr(o1), fs, vr(P + 4 * s + 1)))
    a.i('v_rcp_f32 %s, %s' % (vr(L), vr(L)))
    a.i('v_mul_f32 %s, %s, %s' % (vr(o0), vr(o0), vr(L)))
    a.i('v_mul_f32 %s, %s, %s' % (vr(o1), vr(o1), vr(L)))
    a.i('v_permlane32_swap_b32 %s, %s' % (vr(o0), vr(o1)))
    a.i('v_cvt_pk_bf16_f32 %s, %s, %s' % (vr(t0), vr(o0), vr(o1)))
    a.i('global_store_dword %s, %s, %s' % (vr(vX), vr(t0), sr(sOUT, 2)))
    a.label('L_end2')
    if args.stamp:
        a.i('s_waitcnt vmcnt(0)')
        a.i('s_memrealtime s[44:45]')
        a.i('s_waitcnt lgkmcnt(0)')
        a.i('v_mov_b32 v20, s44')
        a.i('v_mov_b32 v25, s48')
        a.i('s_mov_b64 exec, 1')
        a.i('global_store_dword v25, v20, s[20:21] offset:20')
    a.label('L_end')
    a.i('s_endpgm')
    a.raw('.section .rodata,"a"')
    a.raw('.p2align 6')
    a.raw('.amdhsa_kernel %s' % main)
    a.raw('  .amdhsa_next_free_vgpr %d' % nvgpr)
    a.raw('  .amdhsa_next_free_sgpr 56')
    a.raw('  .amdhsa_accum_offset %d' % ((nvgpr + 3) // 4 * 4))
    a.raw('  .amdhsa_group_segment_fixed_size 0')
    a.raw('  .amdhsa_kernarg_size 72')
    a.raw('  .amdhsa_user_sgpr_count 2')
    a.raw('  .amdhsa_user_sgpr_kernarg_segment_ptr 1')
    a.raw('  .amdhsa_system_sgpr_workgroup_id_x 1')
    a.raw('  .amdhsa_float_denorm_mode_32 3')
    a.raw('.end_amdhsa_kernel')
    return a.text()

if __name__ == '__main__':
    ap = argparse.ArgumentParser()
    ap.add_argument('-o', required=True)
    ap.add_argument('--depth', type=int, default=2)
    ap.add_argument('--nse', type=int, default=64)
    ap.add_argument('--nso', type=int, default=56)
    ap.add_argument('--pol', default='nt')
    ap.add_argument('--noc', action='store_true')
    ap.add_argument('--pretouch', type=int, default=0)
    ap.add_argument('--pos', type=int, default=0)
    ap.add_argument('--align', action='store_true')
    ap.add_argument('--stamp', action='store_true')
    ap.add_argument('--trace', action='store_true')
    args = ap.parse_args()
    write(args, gen(args))
```

```python
import argparse, os, sys
from asmlib import Asm
from gen import HDR, KN, fbits, CS, NEGBIG, MASKC, vr, sr
from gen2 import VMQ, write

NH = 128
NTILE = 512
R = 8

DOC = """
Decode attention, one query per (batch, head): out = softmax(q.[K_cache;k_tree]/sqrt(128) + mask) . [V_cache;v_tree].
The kernel is HBM-bound (512 MiB read once), so everything is arranged around the load stream.

Work split.  256 workgroups x 4 waves, every wave independent (no barriers).  Wave w of workgroup g works on head
  4*(g>>3)+w with role g&7, so the 8 waves of a head sit in 8 consecutive workgroups.  A tile = 16 keys = 4 KiB of K or V;
  lane l loads 16 B: key (l>>4) of 4, dims 8*(l&15)..+7, four non-temporal 1-KiB loads per tile;
  a rolling window of 6 such loads per wave (24 KiB per CU, 8 register slots) is kept in flight: enough to saturate
  HBM, small enough that the memory fabric serves all compute dies evenly.
  * static part: role r owns runs of two tiles, interleaved over the roles (even roles get some more: second sequence).
    Pass 1 streams all static K tiles (scores -> LDS, running max), pass 2 streams the same V tiles with the known max.
  * dynamic part: the last tiles of every head are claimed in pairs through a per-head ticket counter (d_ws, atomics),
    processed K,V interleaved with an online softmax.  This evens out the different speeds of the compute dies.
  * the tree token initialises the state of role 0 (score incl. (1-mask)*-1e9, l = 1, acc = v_tree).
Combine.  Every wave reduces to (acc[128], max, sum), stores it write-through (sc1) into d_ws, waits, then bumps the
  head's arrival counter; the wave that arrives last loads the 8 partials (sc1) and writes the bf16 row.
Counters.  Role 0 zeroes the head's (ticket, arrival) pair at start and then sets the head's bit in d_debug; every wave
  reads that bit before its first ticket.  Nothing found in d_ws / d_out on entry is used.
Scores are kept in log2 units: s = (q.k) * log2(e)/sqrt(128), p = exp2(s - max).
"""

def gen(args):
    NSE, NSO = args.nse, args.nso
    W, D = 4, 2
    ZS = R * NSO + (R // 2) * (NSE - NSO)
    ND = NTILE - ZS
    NF = args.inflight
    assert 5 <= NF <= 7
    NFV = args.nfv or NF
    NFD = args.nfd or NF
    assert NF <= NFV <= 7 and 5 <= NFD <= NFV
    RB = 2
    assert ND % D == 0 and NSE >= NSO and NSE % RB == 0 and NSO % RB == 0 and NSE <= 64
    NP = ND // 2
    NA, NB = NSO // RB, (NSE - NSO) // RB
    pol = (' ' + args.pol.replace('+', ' ')) if args.pol else ''
    NWG = NH * R // W
    LDSW = 64 * 256
    vOFF, vM, vL = 1, 2, 3
    vQ, vS, vACC, vT = 4, 8, 12, 20
    vMX, vAL, vP, vX = 28, 29, 30, 31
    vTK, vONE, vCNT, vFL, vFV, vTR, vLDS, vM0 = 32, 33, 34, 35, 36, 37, 38, 39
    vP4 = 40
    vBUF = 44
    vOFF2 = 43
    nvgpr = vBUF + (64 if args.bigdyn else 32)
    sQ, sK, sV, sKT, sVT, sMASK, sOUT, sDBG, sWS = 4, 6, 8, 10, 12, 14, 16, 18, 20
    sHEAD, sROLE, sWAVE = 22, 23, 3
    srdK, srdV, srdP = 24, 28, 56
    sOFF, sCNT, sT0, sT1, sT2, sTK, sBIT, sNDYN = 32, 33, 34, 35, 36, 37, 38, 39
    sINC, sSEG, sREM, sTI = 52, 53, 54, 55
    sA0, sB0, sNBR = 60, 61, 62
    sCUR, sNXT = 63, 64
    WS_CNT = 0x100000
    a = Asm()
    vm = VMQ(a)
    main = KN + '_kernel'
    a.raw(HDR.rstrip('\n'))
    a.raw('; generated: gen5 ' + ' '.join(x for x in sys.argv[1:]))
    for line in DOC.strip('\n').split('\n'):
        a.raw(('; ' + line).rstrip())
    a.raw('; @launch grid=(%d,1,1) block=(%d,1,1) lds=%d' % (NWG, 64 * W, W * LDSW))
    a.raw('.amdgcn_target "amdgcn-amd-amdhsa--gfx950"')
    a.raw('.text')
    a.raw('.globl %s' % main)
    a.raw('.p2align 8')
    a.raw('.type %s,@function' % main)
    a.raw(main + ':')
    a.i('s_cmp_ge_u32 s2, %d' % NWG)
    a.i('s_cbranch_scc1 L_end')
    a.i('s_load_dwordx16 s[4:19], s[0:1], 0')
    a.i('s_load_dwordx2 s[20:21], s[0:1], 64')
    if args.stamp:
        a.i('s_memrealtime s[40:41]')
        a.i('s_getreg_b32 s46, hwreg(HW_REG_XCC_ID)')
        a.i('s_getreg_b32 s47, hwreg(HW_REG_HW_ID)')
    a.i('v_lshrrev_b32 %s, 6, v0' % vr(vX))
    a.i('v_and_b32 v0, 63, v0')
    a.i('v_readfirstlane_b32 %s, %s' % (sr(sWAVE), vr(vX)))
    a.i('v_lshlrev_b32 %s, 4, v0' % vr(vOFF))
    a.i('v_and_b32 %s, 0xf0, %s' % (vr(vX), vr(vOFF)))
    a.i('s_and_b32 %s, s2, 7' % sr(sROLE))
    a.i('s_lshr_b32 %s, s2, 3' % sr(sT0))
    if args.mix:
        a.i('s_mul_i32 %s, %s, %d' % (sr(sT1), sr(sROLE), args.mix))
        a.i('s_add_u32 %s, %s, %s' % (sr(sT0), sr(sT0), sr(sT1)))
        a.i('s_and_b32 %s, %s, 31' % (sr(sT0), sr(sT0)))
    a.i('s_lshl_b32 %s, %s, 2' % (sr(sT0), sr(sT0)))
    a.i('s_add_u32 %s, %s, %s' % (sr(sHEAD), sr(sT0), sr(sWAVE)))
    a.i('s_lshl_b32 %s, %s, 8' % (sr(sT2), sr(sHEAD)))
    a.i('v_add_u32 %s, %s, %s' % (vr(vX), sr(sT2), vr(vX)))
    a.i('s_lshl_b32 %s, %s, 21' % (sr(sT0), sr(sHEAD)))
    GR = args.gran
    assert GR == 2
    a.i('s_and_b32 %s, %s, 1' % (sr(sT1), sr(sROLE)))
    a.i('s_lshr_b32 %s, %s, 1' % (sr(sB0), sr(sROLE)))
    SEP = args.pos == 2
    if SEP:
        a.i('s_mul_i32 %s, %s, %d' % (sr(sNBR), sr(sT1), 4 * NSE))
        a.i('s_mul_i32 %s, %s, %d' % (sr(sA0), sr(sB0), GR))
        a.i('s_add_u32 %s, %s, %s' % (sr(sA0), sr(sA0), sr(sNBR)))
        a.i('s_lshl_b32 %s, %s, 12' % (sr(sA0), sr(sA0)))
    elif args.pos == 1:
        a.i('s_lshl_b32 %s, %s, 2' % (sr(sNBR), sr(sT1)))
        a.i('s_add_u32 %s, %s, %s' % (sr(sA0), sr(sB0), sr(sNBR)))
        a.i('s_mul_i32 %s, %s, %d' % (sr(sA0), sr(sA0), 4096 * GR))
    else:
        a.i('s_mul_i32 %s, %s, %d' % (sr(sA0), sr(sROLE), 4096 * GR))
    INCA = (R * GR - (GR - 1)) * 4096
    INCB = ((R // 2) * GR - (GR - 1)) * 4096
    if SEP:
        INCA = INCB
    PINCA = INCA + 4096
    PINCB = INCB + 4096
    a.i('s_mov_b32 %s, %s' % (sr(sOFF), sr(sA0)))
    for srd in (srdK, srdV, srdP):
        a.i('s_mov_b32 %s, %d' % (sr(srd + 2), 1 << 21))
        a.i('s_mov_b32 %s, 0x20000' % sr(srd + 3))
    a.i('s_waitcnt lgkmcnt(0)')
    a.i('global_load_dwordx4 %s, %s, %s' % (vr(vQ, 4), vr(vX), sr(sQ, 2)))
    def srd_base(srd, p):
        a.i('s_add_u32 %s, %s, %s' % (sr(srd), sr(p), sr(sT0)))
        a.i('s_addc_u32 %s, %s, 0' % (sr(srd + 1), sr(p + 1)))
        a.i('s_and_b32 %s, %s, 0xffff' % (sr(srd + 1), sr(srd + 1)))
    srd_base(srdK, sK)

    def S(k): return vBUF + 4 * k
    def ld(k, srd, sreg, piece, second=False):
        off = ' offset:%d' % (1024 * piece) if piece else ''
        a.i('buffer_load_dwordx4 %s, %s, %s, %s offen%s%s' % (vr(S(k), 4), vr(vOFF2 if second else vOFF), sr(srd, 4), sr(sreg), off, pol))
    GR = 2
    a.i('v_add_u32 %s, 4096, %s' % (vr(vOFF2), vr(vOFF)))
    vm.q = ['pre']
    NPRO = 8 if args.burst else NF
    for k in range(NPRO):
        ld(k, srdK, sA0, k % 4, k >= 4); vm.issue('S%d' % k)
    srd_base(srdV, sV)
    a.i('s_mov_b64 %s, %s' % (sr(srdP, 2), sr(srdK, 2)))
    a.i('s_mov_b32 %s, %s' % (sr(sCUR), sr(sA0)))
    a.i('s_add_u32 %s, %s, %d' % (sr(sNXT), sr(sA0), PINCA))
    if SEP:
        a.i('s_add_u32 %s, %s, %d' % (sr(sB0), sr(sA0), 4 * NSO * 4096))
    else:
        a.i('s_mul_i32 %s, %s, %d' % (sr(sB0), sr(sB0), GR))
        a.i('s_add_u32 %s, %s, %d' % (sr(sB0), sr(sB0), R * NSO))
        a.i('s_lshl_b32 %s, %s, 12' % (sr(sB0), sr(sB0)))
    a.i('s_cmp_eq_u32 %s, 0' % sr(sT1))
    a.i('s_cselect_b32 %s, %d, 0' % (sr(sNBR), NB))
    a.i('s_add_u32 %s, %s, 0x%x' % (sr(sT2), sr(sT2), WS_CNT))
    a.i('v_mov_b32 %s, %s' % (vr(vCNT), sr(sT2)))
    a.i('v_mov_b32 %s, 1' % vr(vONE))
    a.i('s_and_b32 %s, %s, 31' % (sr(sBIT), sr(sHEAD)))
    a.i('s_lshl_b32 %s, 1, %s' % (sr(sBIT), sr(sBIT)))
    a.i('s_lshr_b32 %s, %s, 5' % (sr(sT2), sr(sHEAD)))
    a.i('s_lshl_b32 %s, %s, 2' % (sr(sT2), sr(sT2)))
    a.i('v_mov_b32 %s, %s' % (vr(vFL), sr(sT2)))
    a.i('s_mov_b32 %s, 0' % sr(sNDYN))
    a.i('s_mul_i32 %s, %s, %d' % (sr(sT2), sr(sWAVE), LDSW))
    a.i('v_lshlrev_b32 %s, 2, v0' % vr(vLDS))
    a.i('v_add_u32 %s, %s, %s' % (vr(vLDS), sr(sT2), vr(vLDS)))
    a.i('v_mov_b32 %s, 0x%x' % (vr(vM), NEGBIG))
    a.i('v_mov_b32 %s, 0' % vr(vL))
    for j in range(8):
        a.i('v_mov_b32 %s, 0' % vr(vACC + j))
    a.i('s_cmp_eq_u32 %s, 0' % sr(sROLE))
    a.i('s_cbranch_scc0 L_notree')
    a.i('v_mov_b32 %s, 0' % vr(vS))
    a.i('v_mov_b32 %s, 0' % vr(vS + 1))
    a.i('s_mov_b64 exec, 1')
    a.i('global_atomic_swap_x2 %s, %s, %s, %s sc0' % (vr(vS + 2, 2), vr(vCNT), vr(vS, 2), sr(sWS, 2)))
    a.i('s_mov_b64 exec, -1')
    a.i('global_load_dwordx4 %s, %s, %s' % (vr(vT, 4), vr(vX), sr(sKT, 2)))
    a.i('global_load_dwordx4 %s, %s, %s' % (vr(vT + 4, 4), vr(vX), sr(sVT, 2)))
    a.i('s_lshr_b32 %s, %s, 5' % (sr(sT2), sr(sHEAD)))
    a.i('s_lshl_b32 %s, %s, 1' % (sr(sT2), sr(sT2)))
    a.i('v_mov_b32 %s, %s' % (vr(vMX), sr(sT2)))
    a.i('global_load_ushort %s, %s, %s' % (vr(vMX), vr(vMX), sr(sMASK, 2)))
    a.i('s_waitcnt vmcnt(0)')
    def publish():
        a.i('v_mov_b32 %s, %s' % (vr(vS + 1), sr(sBIT)))
        a.i('s_mov_b64 exec, 1')
        a.i('global_atomic_or %s, %s, %s' % (vr(vFL), vr(vS + 1), sr(sDBG, 2)))
        a.i('s_mov_b64 exec, -1')
    if not args.lateflag:
        publish()
    for j in range(4):
        a.i('v_dot2_f32_bf16 %s, %s, %s, %s' % (vr(vS), vr(vT + j), vr(vQ + j), '0' if j == 0 else vr(vS)))
    for r in (8, 4, 2, 1):
        a.i('v_add_f32_dpp %s, %s, %s row_ror:%d row_mask:0xf bank_mask:0xf' % (vr(vS), vr(vS), vr(vS), r))
    a.i('v_lshlrev_b32 %s, 16, %s' % (vr(vMX), vr(vMX)))
    a.i('v_sub_f32 %s, 1.0, %s' % (vr(vMX), vr(vMX)))
    a.i('v_mul_f32 %s, 0x%x, %s' % (vr(vMX), MASKC, vr(vMX)))
    a.i('v_mul_f32 %s, 0x%x, %s' % (vr(vS), CS, vr(vS)))
    a.i('s_mov_b64 exec, 0xffff')
    a.i('v_add_f32 %s, %s, %s' % (vr(vM), vr(vS), vr(vMX)))
    for j in range(4):
        a.i('v_lshlrev_b32 %s, 16, %s' % (vr(vACC + 2 * j), vr(vT + 4 + j)))
        a.i('v_and_b32 %s, 0xffff0000, %s' % (vr(vACC + 2 * j + 1), vr(vT + 4 + j)))
    a.i('s_mov_b64 exec, 0xf')
    a.i('v_mov_b32 %s, 1.0' % vr(vL))
    a.i('s_mov_b64 exec, -1')
    a.label('L_notree')
    a.i('v_mov_b32 %s, %s' % (vr(vM0), vr(vM)))
    vm.wait('pre')
    if args.stamp:
        a.i('s_memrealtime s[42:43]')

    BC = [0, 8, 4, 12]
    def dots(k, u):
        for jj in range(4):
            a.i('v_dot2_f32_bf16 %s, %s, %s, %s' % (vr(vS + u), vr(S(k) + jj), vr(vQ + jj), '0' if jj == 0 else vr(vS + u)))
    def reduce_scores():
        s0, s1, s2, s3 = [vr(vS + u) for u in range(4)]
        dp = lambda dst, src, ctl, bank: a.i('v_add_f32_dpp %s, %s, %s %s row_mask:0xf bank_mask:0x%x' % (dst, src, src, ctl, bank))
        dp(s0, s0, 'row_ror:8', 0x3); dp(s2, s2, 'row_ror:8', 0x3)
        dp(s0, s1, 'row_ror:8', 0xc); dp(s2, s3, 'row_ror:8', 0xc)
        dp(s0, s0, 'row_half_mirror', 0x5); dp(s0, s2, 'row_half_mirror', 0xa)
        dp(s0, s0, 'quad_perm:[1,0,3,2]', 0xf); dp(s0, s0, 'quad_perm:[2,3,0,1]', 0xf)
        a.i('v_mul_f32 %s, 0x%x, %s' % (s0, CS, s0))
    def online():
        s0 = vr(vS)
        a.i('v_max_f32_dpp %s, %s, %s row_ror:4 row_mask:0xf bank_mask:0xf' % (vr(vMX), s0, s0))
        a.i('v_max_f32_dpp %s, %s, %s row_ror:8 row_mask:0xf bank_mask:0xf' % (vr(vMX), vr(vMX), vr(vMX)))
        a.i('v_max_f32 %s, %s, %s' % (vr(vMX), vr(vM), vr(vMX)))
        a.i('v_sub_f32 %s, %s, %s' % (vr(vAL), vr(vM), vr(vMX)))
        a.i('v_sub_f32 %s, %s, %s' % (vr(vP), s0, vr(vMX)))
        a.i('v_exp_f32 %s, %s' % (vr(vAL), vr(vAL)))
        a.i('v_exp_f32 %s, %s' % (vr(vP), vr(vP)))
        a.i('v_mov_b32 %s, %s' % (vr(vM), vr(vMX)))
        for j in range(8):
            a.i('v_mul_f32 %s, %s, %s' % (vr(vACC + j), vr(vAL), vr(vACC + j)))
        a.i('v_fma_f32 %s, %s, %s, %s' % (vr(vL), vr(vL), vr(vAL), vr(vP)))
    def pv1(k, u, preg):
        v = S(k)
        for jj in range(4):
            a.i('v_lshlrev_b32 %s, 16, %s' % (vr(vT + 2 * jj), vr(v + jj)))
            a.i('v_and_b32 %s, 0xffff0000, %s' % (vr(vT + 2 * jj + 1), vr(v + jj)))
        for jj in range(8):
            a.i('v_fmac_f32_dpp %s, %s, %s row_newbcast:%d row_mask:0xf bank_mask:0xf' % (vr(vACC + jj), vr(preg), vr(vT + jj), BC[u]))
    def req_ticket():
        a.i('s_mov_b64 exec, 1')
        a.i('global_atomic_add %s, %s, %s, %s sc0' % (vr(vTK), vr(vCNT), vr(vONE), sr(sWS, 2)))
        a.i('s_mov_b64 exec, -1')
    trn = [0]
    def trace(half=False):
        if args.trace:
            if half:
                trn[0] += 1
                a.i('s_xor_b32 s65, s65, 1')
                a.i('s_cbranch_scc1 L_notr%d' % trn[0])
            trace0()
            if half:
                a.label('L_notr%d' % trn[0])
    def trace0():
        if args.trace:
            a.i('s_memrealtime s[50:51]')
            a.i('s_waitcnt lgkmcnt(0)')
            a.i('s_mov_b32 m0, s%d' % sTI)
            a.i('s_nop 3')
            a.i('v_writelane_b32 %s, s50, m0' % vr(vTR))
            a.i('s_add_u32 s%d, s%d, 1' % (sTI, sTI))
    if args.trace:
        a.i('v_mov_b32 %s, 0' % vr(vTR))
        a.i('s_mov_b32 s%d, 0' % sTI)
        a.i('s_mov_b32 s65, 0')
    def refill_pair(i, q, srd_cur, srd_nxt, nf=None):
        j = i + (nf or NF)
        if j < 8:
            ld(j, srd_cur, sCUR, j % 4, j >= 4)
        elif srd_nxt is not None:
            j -= 8
            ld(j, srd_nxt, sNXT, j % 4, j >= 4)
        else:
            return
        q.issue('S%d' % j)
    def refill_tile(i, q, cur_is_pair, nxt):
        j = i + (NFV if cur_is_pair else NFD)
        if j >= 8 + NFD:
            return
        if j < 8:
            if cur_is_pair:
                ld(j, srdV, sCUR, j % 4, j >= 4)
            else:
                assert j >= 4
                ld(j, srdV, sCUR, j - 4)
        elif nxt:
            j -= 8
            if j < 4: ld(j, srdK, sNXT, j)
            else: ld(j, srdV, sNXT, j - 4)
        else:
            return
        q.issue('S%d' % j)
    def step_next():
        a.i('s_mov_b32 %s, %s' % (sr(sCUR), sr(sNXT)))
        a.i('s_add_u32 %s, %s, %s' % (sr(sNXT), sr(sNXT), sr(sINC)))

    a.i('s_mov_b32 %s, %d' % (sr(sINC), PINCA))
    a.i('s_mov_b32 %s, %d' % (sr(sCNT), NA - 1 - (1 if args.burst else 0)))
    a.i('s_cmp_eq_u32 %s, 0' % sr(sNBR))
    a.i('s_cselect_b32 %s, 1, 2' % sr(sSEG))
    def k_iter(skip_cur):
        for i in range(8):
            vm.wait('S%d' % i)
            if not (skip_cur and i + NF < 8):
                refill_pair(i, vm, srdK, srdP)
            dots(i, i % 4)
            if i % 4 == 3:
                reduce_scores()
                a.i('v_max_f32 %s, %s, %s' % (vr(vM), vr(vM), vr(vS)))
                a.i('ds_write_b32 %s, %s offset:%d' % (vr(vLDS), vr(vS), 256 * (i // 4)))
    if args.burst:
        k_iter(True)
        a.i('v_add_u32 %s, 512, %s' % (vr(vLDS), vr(vLDS)))
        step_next()
        trace(True)
    q0 = list(vm.q)
    if args.align: a.raw('.p2align 6')
    a.label('L_kloop')
    if args.pretouch:
        a.i('s_cmp_eq_u32 %s, %d' % (sr(sCNT), args.pretouch))
        a.i('s_cbranch_scc0 L_notouch')
        a.i('s_mov_b64 exec, 1')
        a.i('buffer_load_dword %s, %s, %s, %s offen%s' % (vr(42), vr(vOFF), sr(srdV, 4), sr(sA0), pol))
        a.i('s_mov_b64 exec, -1')
        a.label('L_notouch')
    k_iter(False)
    assert vm.q == q0, (vm.q, q0)
    a.i('v_add_u32 %s, 512, %s' % (vr(vLDS), vr(vLDS)))
    step_next()
    trace(True)
    a.i('s_sub_u32 %s, %s, 1' % (sr(sCNT), sr(sCNT)))
    a.i('s_cmp_lg_u32 %s, 0' % sr(sCNT))
    a.i('s_cbranch_scc1 L_kloop')
    a.i('s_cmp_eq_u32 %s, 2' % sr(sSEG))
    a.i('s_cbranch_scc0 L_kseg1')
    a.i('s_mov_b32 %s, %s' % (sr(sNXT), sr(sB0)))
    a.i('s_mov_b32 %s, %d' % (sr(sINC), PINCB))
    a.i('s_mov_b32 %s, %s' % (sr(sCNT), sr(sNBR)))
    a.i('s_mov_b32 %s, 1' % sr(sSEG))
    a.i('s_branch L_kloop')
    a.label('L_kseg1')
    a.i('s_cmp_eq_u32 %s, 1' % sr(sSEG))
    a.i('s_cbranch_scc0 L_kdone')
    a.i('s_mov_b64 %s, %s' % (sr(srdP, 2), sr(srdV, 2)))
    a.i('s_mov_b32 %s, %s' % (sr(sNXT), sr(sA0)))
    a.i('s_mov_b32 %s, %d' % (sr(sINC), PINCA))
    a.i('s_mov_b32 %s, 1' % sr(sCNT))
    a.i('s_mov_b32 %s, 0' % sr(sSEG))
    a.i('s_branch L_kloop')
    a.label('L_kdone')
    if args.stamp2:
        a.i('s_memrealtime s[42:43]')
        a.i('s_waitcnt lgkmcnt(0)')
    for k in range(NF, NFV):
        ld(k, srdV, sCUR, k % 4, k >= 4); vm.issue('S%d' % k)
    qv0 = list(vm.q)
    a.i('v_max_f32_dpp %s, %s, %s row_ror:4 row_mask:0xf bank_mask:0xf' % (vr(vM), vr(vM), vr(vM)))
    a.i('s_mul_i32 %s, %s, %d' % (sr(sT2), sr(sWAVE), LDSW))
    a.i('v_lshlrev_b32 %s, 2, v0' % vr(vLDS))
    a.i('v_max_f32_dpp %s, %s, %s row_ror:8 row_mask:0xf bank_mask:0xf' % (vr(vM), vr(vM), vr(vM)))
    a.i('v_add_u32 %s, %s, %s' % (vr(vLDS), sr(sT2), vr(vLDS)))
    a.i('v_sub_f32 %s, %s, %s' % (vr(vAL), vr(vM0), vr(vM)))
    a.i('v_exp_f32 %s, %s' % (vr(vAL), vr(vAL)))
    a.i('s_add_u32 %s, %s, %d' % (sr(sREM), sr(sNBR), NA - 1))
    a.i('s_mov_b32 %s, %d' % (sr(sCNT), NA - 1))
    a.i('v_mul_f32 %s, %s, %s' % (vr(vL), vr(vAL), vr(vL)))
    for j in range(8):
        a.i('v_mul_f32 %s, %s, %s' % (vr(vACC + j), vr(vAL), vr(vACC + j)))
    def vtop():
        a.i('ds_read2st64_b32 %s, %s offset0:0 offset1:1' % (vr(vP4, 2), vr(vLDS)))
    def vprob():
        a.i('s_waitcnt lgkmcnt(0)')
        for j in range(2):
            a.i('v_sub_f32 %s, %s, %s' % (vr(vP4 + j), vr(vP4 + j), vr(vM)))
        for j in range(2):
            a.i('v_exp_f32 %s, %s' % (vr(vP4 + j), vr(vP4 + j)))
        a.i('v_add_u32 %s, 512, %s' % (vr(vLDS), vr(vLDS)))
        a.i('v_add_f32 %s, %s, %s' % (vr(vMX), vr(vP4), vr(vP4 + 1)))
        a.i('v_add_f32 %s, %s, %s' % (vr(vL), vr(vL), vr(vMX)))
    if args.align: a.raw('.p2align 6')
    a.label('L_vloop')
    vtop()
    if args.lateflag:
        a.i('s_cmp_eq_u32 %s, 3' % sr(sREM))
        a.i('s_cbranch_scc0 L_nolate')
        a.i('s_cmp_eq_u32 %s, 0' % sr(sROLE))
        a.i('s_cbranch_scc0 L_nolate')
        publish()
        a.label('L_nolate')
    a.i('s_cmp_eq_u32 %s, 2' % sr(sREM))
    a.i('s_cbranch_scc0 L_noflagld')
    a.i('global_load_dword %s, %s, %s sc1' % (vr(vFV), vr(vFL), sr(sDBG, 2)))
    a.label('L_noflagld')
    vm.wait('S0')
    a.i('s_cmp_eq_u32 %s, 1' % sr(sREM))
    a.i('s_cbranch_scc0 L_noreq')
    a.i('v_readfirstlane_b32 %s, %s' % (sr(sT0), vr(vFV)))
    a.i('s_and_b32 %s, %s, %s' % (sr(sT0), sr(sT0), sr(sBIT)))
    a.i('s_cbranch_scc1 L_flag_ok')
    a.i('s_mov_b32 %s, 0x100000' % sr(sT1))
    a.label('L_spin')
    a.i('global_load_dword %s, %s, %s sc1' % (vr(vFV), vr(vFL), sr(sDBG, 2)))
    a.i('s_waitcnt vmcnt(0)')
    a.i('v_readfirstlane_b32 %s, %s' % (sr(sT0), vr(vFV)))
    a.i('s_and_b32 %s, %s, %s' % (sr(sT0), sr(sT0), sr(sBIT)))
    a.i('s_cbranch_scc1 L_flag_ok')
    a.i('s_sub_u32 %s, %s, 1' % (sr(sT1), sr(sT1)))
    a.i('s_cmp_lg_u32 %s, 0' % sr(sT1))
    a.i('s_cbranch_scc1 L_spin')
    a.label('L_flag_ok')
    req_ticket()
    a.label('L_noreq')
    for i in range(8):
        vm.wait('S%d' % i)
        refill_pair(i, vm, srdV, srdV, NFV)
        if i == 0:
            vprob()
        pv1(i, i % 4, vP4 + i // 4)
    assert vm.q == qv0, (vm.q, qv0)
    step_next()
    trace(True)
    a.i('s_sub_u32 %s, %s, 1' % (sr(sREM), sr(sREM)))
    a.i('s_sub_u32 %s, %s, 1' % (sr(sCNT), sr(sCNT)))
    a.i('s_cmp_lg_u32 %s, 0' % sr(sCNT))
    a.i('s_cbranch_scc1 L_vloop')
    a.i('s_cmp_eq_u32 %s, 0' % sr(sREM))
    a.i('s_cbranch_scc1 L_vlast')
    a.i('s_mov_b32 %s, %s' % (sr(sNXT), sr(sB0)))
    a.i('s_mov_b32 %s, %d' % (sr(sINC), PINCB))
    a.i('s_mov_b32 %s, %s' % (sr(sCNT), sr(sREM)))
    a.i('s_branch L_vloop')
    a.label('L_vlast')
    if args.stamp2:
        a.i('s_memrealtime s[66:67]')
        a.i('s_waitcnt lgkmcnt(0)')
    vtop()
    vm.wait('S0')
    a.i('v_readfirstlane_b32 %s, %s' % (sr(sTK), vr(vTK)))
    a.i('s_cmp_ge_u32 %s, %d' % (sr(sTK), NP))
    a.i('s_cbranch_scc1 L_vonly')
    qv = vm.copy()
    def ticket_to_nxt():
        a.i('s_lshl_b32 %s, %s, 13' % (sr(sNXT), sr(sTK)))
        a.i('s_add_u32 %s, %s, %d' % (sr(sNXT), sr(sNXT), ZS * 4096))
        if args.stamp:
            a.i('s_add_u32 %s, %s, 2' % (sr(sNDYN), sr(sNDYN)))
    if not args.bigdyn:
        ticket_to_nxt()
        for i in range(8):
            vm.wait('S%d' % i)
            refill_tile(i, vm, True, True)
            if i == 0:
                vprob()
            pv1(i, i % 4, vP4 + i // 4)
        a.i('s_mov_b32 %s, %s' % (sr(sCUR), sr(sNXT)))
        trace(True)
        def tile_body(q, nxt, first_waited):
            for i in range(8):
                q.wait('S%d' % i)
                refill_tile(i, q, False, nxt)
                if i < 4:
                    dots(i, i)
                    if i == 3:
                        reduce_scores()
                        online()
                else:
                    pv1(i, i - 4, vP)
        q1 = list(vm.q)
        if args.align: a.raw('.p2align 6')
        a.label('L_dloop')
        a.i('s_add_u32 %s, %s, 4096' % (sr(sNXT), sr(sCUR)))
        vm.wait('S0')
        req_ticket(); vm.issue('T')
        tile_body(vm, True, True)
        a.i('s_mov_b32 %s, %s' % (sr(sCUR), sr(sNXT)))
        vm.wait('S0')
        vm.wait('T')
        a.i('v_readfirstlane_b32 %s, %s' % (sr(sTK), vr(vTK)))
        a.i('s_cmp_ge_u32 %s, %d' % (sr(sTK), NP))
        a.i('s_cbranch_scc1 L_drain')
        qd = vm.copy()
        ticket_to_nxt()
        tile_body(vm, True, True)
        a.i('s_mov_b32 %s, %s' % (sr(sCUR), sr(sNXT)))
        assert vm.q == q1, (vm.q, q1)
        trace()
        a.i('s_branch L_dloop')
    else:
        def ldt(k, q):
            part, piece = divmod(k, 4)
            ld(k, srdK if part % 2 == 0 else srdV, sNXT, piece, part >= 2)
            q.issue('B%d' % part)
        req_ticket(); vm.issue('T')
        ticket_to_nxt()
        for i in range(8):
            vm.wait('S%d' % i)
            j = i + NF
            if j < 8:
                ld(j, srdV, sCUR, j % 4, j >= 4); vm.issue('S%d' % j)
            if i == 0:
                vprob()
            pv1(i, i % 4, vP4 + i // 4)
            ldt(i, vm)
        for k in range(8, 16):
            ldt(k, vm)
        trace()
        assert vm.q[-12:] == ['B1'] * 4 + ['B2'] * 4 + ['B3'] * 4 and set(vm.q[:-12]) <= {'T', 'B0'}
        vm.q = ['T'] + ['B0'] * 4 + ['B1'] * 4 + ['B2'] * 4 + ['B3'] * 4
        q1 = list(vm.q)
        if args.align: a.raw('.p2align 6')
        a.label('L_dloop')
        vm.wait('B0')
        vm.wait('T')
        a.i('v_readfirstlane_b32 %s, %s' % (sr(sTK), vr(vTK)))
        a.i('s_cmp_ge_u32 %s, %d' % (sr(sTK), NP))
        a.i('s_cbranch_scc1 L_drain')
        qd = vm.copy()
        req_ticket(); vm.issue('T')
        ticket_to_nxt()
        def pair_body(q, pre):
            for d in range(2):
                q.wait('B%d' % (2 * d))
                for u in range(4):
                    dots(8 * d + u, u)
                if pre:
                    for u in range(4): ldt(8 * d + u, q)
                reduce_scores()
                online()
                q.wait('B%d' % (2 * d + 1))
                for u in range(4):
                    pv1(8 * d + 4 + u, u, vP)
                    if pre: ldt(8 * d + 4 + u, q)
        pair_body(vm, True)
        assert vm.q == q1, (vm.q, q1)
        trace()
        a.i('s_branch L_dloop')
    a.label('L_vonly')
    for i in range(8):
        qv.wait('S%d' % i)
        refill_tile(i, qv, True, False)
        if i == 0:
            vprob()
        pv1(i, i % 4, vP4 + i // 4)
    a.i('s_branch L_fin')
    a.label('L_drain')
    if args.bigdyn:
        pair_body(qd, False)
    else:
        tile_body(qd, False, True)
    a.label('L_fin')
    if args.trace:
        trace()
        a.i('s_mul_i32 s48, s2, %d' % W)
        a.i('s_add_u32 s48, s48, %s' % sr(sWAVE))
        a.i('s_lshl_b32 s48, s48, 8')
        a.i('s_add_u32 s48, s48, 0x2000000')
        a.i('v_lshlrev_b32 v20, 2, v0')
        a.i('v_add_u32 v20, s48, v20')
        a.i('global_store_dword v20, %s, s[20:21]' % vr(vTR))
    if args.stamp:
        a.i('s_memrealtime s[44:45]')
        a.i('s_waitcnt lgkmcnt(0)')
        a.i('s_mul_i32 s48, s2, %d' % W)
        a.i('s_add_u32 s48, s48, %s' % sr(sWAVE))
        a.i('s_lshl_b32 s48, s48, 5')
        a.i('s_add_u32 s48, s48, 0x1000000')
        a.i('v_mov_b32 v20, s40')
        a.i('v_mov_b32 v21, s42')
        a.i('v_mov_b32 v22, s44')
        a.i('v_mov_b32 v23, s46')
        a.i('v_mov_b32 v24, s47')
        a.i('v_mov_b32 v25, s48')
        a.i('s_and_b32 s49, %s, 1' % sr(sROLE))
        a.i('s_cmp_eq_u32 s49, 0')
        a.i('s_cselect_b32 s49, %d, 0' % (NSE - NSO))
        a.i('s_add_u32 s49, s49, %s' % sr(sNDYN))
        a.i('v_mov_b32 v26, s49')
        a.i('v_mov_b32 v27, %s' % ('s66' if args.stamp2 else '0'))
        a.i('s_mov_b64 exec, 1')
        a.i('global_store_dwordx4 v25, v[20:23], s[20:21]')
        a.i('global_store_dword v25, v24, s[20:21] offset:16')
        a.i('global_store_dwordx2 v25, v[26:27], s[20:21] offset:24')
        a.i('s_mov_b64 exec, -1')
        a.i('s_nop 1')
    t0, t1 = vT, vT + 1
    a.i('v_add_f32_dpp %s, %s, %s row_ror:4 row_mask:0xf bank_mask:0xf' % (vr(vL), vr(vL), vr(vL)))
    a.i('v_mov_b32 %s, %s' % (vr(t0), vr(vM)))
    a.i('v_mov_b32 %s, %s' % (vr(t1), vr(vM)))
    a.i('v_add_f32_dpp %s, %s, %s row_ror:8 row_mask:0xf bank_mask:0xf' % (vr(vL), vr(vL), vr(vL)))
    a.i('v_permlane32_swap_b32 %s, %s' % (vr(t0), vr(t1)))
    a.i('v_max_f32 %s, %s, %s' % (vr(t0), vr(t0), vr(t1)))
    a.i('v_mov_b32 %s, %s' % (vr(t1), vr(t0)))
    a.i('v_permlane16_swap_b32 %s, %s' % (vr(t0), vr(t1)))
    a.i('v_max_f32 %s, %s, %s' % (vr(vMX), vr(t0), vr(t1)))
    a.i('v_sub_f32 %s, %s, %s' % (vr(vAL), vr(vM), vr(vMX)))
    a.i('v_exp_f32 %s, %s' % (vr(vAL), vr(vAL)))
    a.i('s_lshl_b32 %s, %s, 13' % (sr(sT0), sr(sHEAD)))
    a.i('v_add_u32 %s, %s, %s' % (vr(vOFF), sr(sT0), vr(vOFF)))
    a.i('s_lshl_b32 %s, %s, 10' % (sr(sT1), sr(sROLE)))
    a.i('v_add_u32 %s, %s, %s' % (vr(vX), sr(sT1), vr(vOFF)))
    a.i('v_mul_f32 %s, %s, %s' % (vr(vL), vr(vAL), vr(vL)))
    for j in range(8):
        a.i('v_mul_f32 %s, %s, %s' % (vr(vACC + j), vr(vAL), vr(vACC + j)))
    a.i('v_mov_b32 %s, %s' % (vr(t1), vr(vL)))
    a.i('v_permlane32_swap_b32 %s, %s' % (vr(vL), vr(t1)))
    for j in range(4):
        a.i('v_permlane32_swap_b32 %s, %s' % (vr(vACC + 2 * j), vr(vACC + 2 * j + 1)))
    a.i('v_add_f32 %s, %s, %s' % (vr(vL), vr(vL), vr(t1)))
    for j in range(4):
        a.i('v_add_f32 %s, %s, %s' % (vr(vACC + 2 * j), vr(vACC + 2 * j), vr(vACC + 2 * j + 1)))
    a.i('v_mov_b32 %s, %s' % (vr(t1), vr(vL)))
    a.i('v_permlane16_swap_b32 %s, %s' % (vr(vACC + 0), vr(vACC + 2)))
    a.i('v_permlane16_swap_b32 %s, %s' % (vr(vACC + 4), vr(vACC + 6)))
    a.i('v_permlane16_swap_b32 %s, %s' % (vr(vL), vr(t1)))
    a.i('v_add_f32 %s, %s, %s' % (vr(vACC + 0), vr(vACC + 0), vr(vACC + 2)))
    a.i('v_add_f32 %s, %s, %s' % (vr(vACC + 1), vr(vACC + 4), vr(vACC + 6)))
    a.i('v_add_f32 %s, %s, %s' % (vr(vACC + 3), vr(vL), vr(t1)))
    a.i('v_mov_b32 %s, %s' % (vr(vACC + 2), vr(vMX)))
    a.i('global_store_dwordx4 %s, %s, %s sc1' % (vr(vX), vr(vACC, 4), sr(sWS, 2)))
    a.i('s_waitcnt vmcnt(0)')
    a.i('s_mov_b64 exec, 1')
    a.i('global_atomic_add %s, %s, %s, %s offset:4 sc0' % (vr(vAL), vr(vCNT), vr(vONE), sr(sWS, 2)))
    a.i('s_waitcnt vmcnt(0)')
    a.i('v_readfirstlane_b32 %s, %s' % (sr(sT2), vr(vAL)))
    a.i('s_mov_b64 exec, -1')
    a.i('s_cmp_eq_u32 %s, %d' % (sr(sT2), R - 1))
    a.i('s_cbranch_scc0 L_end2')
    P = vBUF
    for s in range(R):
        if s == 4:
            a.i('v_add_u32 %s, 4096, %s' % (vr(vOFF), vr(vOFF)))
        a.i('global_load_dwordx4 %s, %s, %s offset:%d sc1' % (vr(P + 4 * s, 4), vr(vOFF), sr(sWS, 2), 1024 * (s % 4)))
    a.i('v_and_b32 %s, 15, v0' % vr(vX))
    a.i('v_lshlrev_b32 %s, 4, %s' % (vr(vX), vr(vX)))
    a.i('v_lshrrev_b32 %s, 4, v0' % vr(vP))
    a.i('v_lshl_add_u32 %s, %s, 2, %s' % (vr(vX), vr(vP), vr(vX)))
    a.i('s_lshl_b32 %s, %s, 8' % (sr(sT0), sr(sHEAD)))
    a.i('v_add_u32 %s, %s, %s' % (vr(vX), sr(sT0), vr(vX)))
    a.i('s_waitcnt vmcnt(0)')
    mx, L, o0, o1 = vMX, vL, vACC, vACC + 1
    a.i('v_max3_f32 %s, %s, %s, %s' % (vr(mx), vr(P + 2), vr(P + 6), vr(P + 10)))
    a.i('v_max3_f32 %s, %s, %s, %s' % (vr(vAL), vr(P + 14), vr(P + 18), vr(P + 22)))
    a.i('v_max3_f32 %s, %s, %s, %s' % (vr(mx), vr(mx), vr(P + 26), vr(P + 30)))
    a.i('v_max_f32 %s, %s, %s' % (vr(mx), vr(mx), vr(vAL)))
    for s in range(R):
        a.i('v_sub_f32 %s, %s, %s' % (vr(P + 4 * s + 2), vr(P + 4 * s + 2), vr(mx)))
    for s in range(R):
        a.i('v_exp_f32 %s, %s' % (vr(P + 4 * s + 2), vr(P + 4 * s + 2)))
    for s in range(R):
        fs = vr(P + 4 * s + 2)
        if s == 0:
            a.i('v_mul_f32 %s, %s, %s' % (vr(L), fs, vr(P + 3)))
            a.i('v_mul_f32 %s, %s, %s' % (vr(o0), fs, vr(P + 0)))
            a.i('v_mul_f32 %s, %s, %s' % (vr(o1), fs, vr(P + 1)))
        else:
            a.i('v_fmac_f32 %s, %s, %s' % (vr(L), fs, vr(P + 4 * s + 3)))
            a.i('v_fmac_f32 %s, %s, %s' % (vr(o0), fs, vr(P + 4 * s + 0)))
            a.i('v_fmac_f32 %s, %s, %s' % (vr(o1), fs, vr(P + 4 * s + 1)))
    a.i('v_rcp_f32 %s, %s' % (vr(L), vr(L)))
    a.i('v_mul_f32 %s, %s, %s' % (vr(o0), vr(o0), vr(L)))
    a.i('v_mul_f32 %s, %s, %s' % (vr(o1), vr(o1), vr(L)))
    a.i('v_permlane32_swap_b32 %s, %s' % (vr(o0), vr(o1)))
    a.i('v_cvt_pk_bf16_f32 %s, %s, %s' % (vr(t0), vr(o0), vr(o1)))
    a.i('global_store_dword %s, %s, %s%s' % (vr(vX), vr(t0), sr(sOUT, 2), (' ' + args.outpol.replace('+', ' ')) if args.outpol else ''))
    a.label('L_end2')
    if args.stamp:
        a.i('s_waitcnt vmcnt(0)')
        a.i('s_memrealtime s[44:45]')
        a.i('s_waitcnt lgkmcnt(0)')
        a.i('v_mov_b32 v20, s44')
        a.i('v_mov_b32 v25, s48')
        a.i('s_mov_b64 exec, 1')
        a.i('global_store_dword v25, v20, s[20:21] offset:20')
    a.label('L_end')
    a.i('s_endpgm')
    a.raw('.section .rodata,"a"')
    a.raw('.p2align 6')
    a.raw('.amdhsa_kernel %s' % main)
    a.raw('  .amdhsa_next_free_vgpr %d' % nvgpr)
    a.raw('  .amdhsa_next_free_sgpr 72')
    a.raw('  .amdhsa_accum_offset %d' % ((nvgpr + 3) // 4 * 4))
    a.raw('  .amdhsa_group_segment_fixed_size 0')
    a.raw('  .amdhsa_kernarg_size 72')
    a.raw('  .amdhsa_user_sgpr_count 2')
    a.raw('  .amdhsa_user_sgpr_kernarg_segment_ptr 1')
    a.raw('  .amdhsa_system_sgpr_workgroup_id_x 1')
    a.raw('  .amdhsa_float_denorm_mode_32 3')
    a.raw('.end_amdhsa_kernel')
    return a.text()

if __name__ == '__main__':
    ap = argparse.ArgumentParser()
    ap.add_argument('-o', required=True)
    ap.add_argument('--nse', type=int, default=64)
    ap.add_argument('--nso', type=int, default=52)
    ap.add_argument('--pol', default='nt')
    ap.add_argument('--early', action='store_true')
    ap.add_argument('--inflight', type=int, default=6)
    ap.add_argument('--burst', action='store_true')
    ap.add_argument('--pretouch', type=int, default=0)
    ap.add_argument('--mix', type=int, default=0)
    ap.add_argument('--nfv', type=int, default=0)
    ap.add_argument('--nfd', type=int, default=0)
    ap.add_argument('--bigdyn', action='store_true')
    ap.add_argument('--singles', type=int, default=0)
    ap.add_argument('--outpol', default='')
    ap.add_argument('--gran', type=int, default=2)
    ap.add_argument('--pos', type=int, default=0)
    ap.add_argument('--align', action='store_true')
    ap.add_argument('--stamp', action='store_true')
    ap.add_argument('--lateflag', action='store_true')
    ap.add_argument('--stamp2', action='store_true')
    ap.add_argument('--trace', action='store_true')
    args = ap.parse_args()
    write(args, gen(args))
```
